```python
import torch

def _softmax(x, axis=-1):
    return torch.softmax(x, dim=axis)
def _gelu(x):
    return torch.nn.functional.gelu(x, approximate="tanh")
def _silu(x):
    return torch.nn.functional.silu(x)
def _sigmoid(x):
    return torch.sigmoid(x)
def _layernorm(x, axis=-1, eps=1e-5):
    m = x.mean(dim=axis, keepdim=True)
    v = x.var(dim=axis, keepdim=True, unbiased=False)
    return (x - m) / torch.sqrt(v + eps)
def _scatter_add(tgt, idx, src, axis=0):
    return tgt.clone().index_add_(axis, idx, src)
def _segment_sum(src, seg, n):
    out = torch.zeros((n,) + src.shape[1:], dtype=src.dtype)
    return out.index_add_(0, seg, src)
def _pad(x, pw):
    flat = tuple(v for pair in reversed(pw) for v in pair)
    return torch.nn.functional.pad(x, flat)

kernel_name = 'gated_mix__spectral_gfnet__mha_block__prompt'

def setup_inputs():

    _w = (lambda a: (lambda t: t.to(torch.bfloat16) if t.is_floating_point() else t)(torch.as_tensor(a)))
    def _A_setup():
        B, S, D = 1, 2048, 448
        Df = D // 2 + 1
        return {
            "x": _w((lambda *s: torch.randn(*s, dtype=torch.bfloat16) * 0.05)(B, S, D)),
            "w_r": _w((lambda *s: torch.randn(*s, dtype=torch.bfloat16) * 6.4)(S, Df) * 0.02),
            "w_i": _w((lambda *s: torch.randn(*s, dtype=torch.bfloat16) * 6.4)(S, Df) * 0.02),
        }
    _A_in = _A_setup()

    def _B_setup():
        B, S, D, H = 1, 2048, 448, 16
        return {
            "x": _w((lambda *s: torch.randn(*s, dtype=torch.bfloat16) * 0.05)(B, S, D)),
            "wqkv": _w((lambda *s: torch.randn(*s, dtype=torch.bfloat16) * 0.8)(D, 3 * D)),
            "wo": _w((lambda *s: torch.randn(*s, dtype=torch.bfloat16) * 0.05)(D, D)),
        }
    _B_in = _B_setup()

    return {
        "A_x": _A_in["x"],
        "A_w_r": _A_in["w_r"],
        "A_w_i": _A_in["w_i"],
        "B_x": _B_in["x"],
        "B_wqkv": _B_in["wqkv"],
        "B_wo": _B_in["wo"],
        "gate_w": _w((lambda *s: torch.randn(*s, dtype=torch.bfloat16) * 0.05)(448) * 16.0),
    }

def reference(A_x, A_w_r, A_w_i, B_x, B_wqkv, B_wo, gate_w):
    def _A_ref(x, w_r, w_i):
        B, S, D = x.shape
        X = (lambda x, axes=(-2,-1): torch.fft.rfft2(x.float(), dim=axes))(x, axes=(-2, -1))
        W = w_r + 1j * w_i
        X = X * W
        y = (lambda x, s, axes=(-2,-1): torch.fft.irfft2(x, s=s, dim=axes).to(torch.bfloat16))(X, (S, D), axes=(-2, -1))
        return y

    def _B_ref(x, wqkv, wo):
        B, S, D = x.shape
        H = 16
        Dh = D // H
        qkv = (lambda x, *d: x.permute(*d))((x @ wqkv).reshape(B, S, 3, H, Dh), 2, 0, 3, 1, 4)
        q, k, v = qkv[0], qkv[1], qkv[2]
        scores = torch.einsum("bhqd,bhkd->bhqk", q, k) * (Dh ** -0.5)
        p = _softmax(scores, axis=-1)
        o = torch.einsum("bhqk,bhkd->bhqd", p, v)
        return (lambda x, *d: x.permute(*d))(o, 0, 2, 1, 3).reshape(B, S, D) @ wo

    x = A_x
    g = _sigmoid((x * gate_w).sum(-1, keepdims=True))
    a = _A_ref(x, A_w_r, A_w_i)
    b = _B_ref(x, B_wqkv, B_wo)
    return g * a + (1 - g) * b
```

```python
from gen import *
import gen

K2_COMB = 0
K2_EX = 49152
K2_CNT = 57344
K2_LDS = 57600


def k2():
    name = "k2_kernel"
    header(name)
    gen._st[0] = 0
    e("s_cmp_ge_u32 s2, 256")
    e("s_cbranch_scc1 k2_end")
    stamp()
    e("s_load_dwordx2 s[18:19], s[0:1], 72")
    e("v_lshrrev_b32 v1, 6, v0")
    e("v_and_b32 v2, 63, v0")
    e("v_readfirstlane_b32 s24, v1")
    e("v_lshlrev_b32 v3, 4, v2")
    e("s_cmp_ge_u32 s24, 4")
    e("s_cbranch_scc1 k2_fft")
    Q, O, S, P, KV = 16, 48, 112, 144, 152
    e("s_and_b32 s20, s2, 7")
    e("s_lshr_b32 s21, s2, 3")
    e("s_lshl_b32 s22, s20, 1")
    e("s_and_b32 s23, s21, 1")
    e("s_add_u32 s22, s22, s23")
    e("s_lshr_b32 s23, s21, 1")
    e("v_and_b32 v4, 0x33f, v3")
    e("v_bfe_u32 v5, v3, 6, 1")
    e("v_lshl_or_b32 v4, v5, 7, v4")
    e("v_bfe_u32 v5, v3, 7, 1")
    e("v_lshl_or_b32 v4, v5, 6, v4")
    e("s_lshl_b32 s25, s22, 17")
    e("s_lshl_b32 s26, s24, 15")
    e("s_add_u32 s26, s26, s25")
    e(f"s_add_u32 s27, s26, {KF}")
    e(f"s_add_u32 s26, s26, {VF}")
    e("s_waitcnt lgkmcnt(0)")
    add64s(28, 18, 27)
    add64s(30, 18, 26)
    vm = Cnt("vmcnt", 63)

    def ldkv(buf, off):
        b = KV + 16 * buf
        e(f"global_load_dwordx4 {vr(b, 4)}, v4, s[28:29] offset:{off}")
        e(f"global_load_dwordx4 {vr(b + 4, 4)}, v4, s[28:29] offset:{off + 1024}")
        e(f"global_load_dwordx4 {vr(b + 8, 4)}, v3, s[30:31] offset:{off}")
        e(f"global_load_dwordx4 {vr(b + 12, 4)}, v3, s[30:31] offset:{off + 1024}")

    def adv(n):
        e(f"s_add_u32 s28, s28, {n}")
        e("s_addc_u32 s29, s29, 0")
        e(f"s_add_u32 s30, s30, {n}")
        e("s_addc_u32 s31, s31, 0")

    e("s_lshl_b32 s32, s23, 13")
    e("s_add_u32 s32, s32, s25")
    if QF: e(f"s_add_u32 s32, s32, {QF}")
    for jj in range(4):
        e(f"s_add_u32 s33, s24, {1 + jj}")
        e("s_and_b32 s33, s33, 3")
        e("s_lshl_b32 s33, s33, 11")
        e("s_add_u32 s33, s33, s32")
        add64s(34, 18, 33)
        if jj == 0:
            e(f"global_load_dwordx4 {vr(Q, 4)}, v3, s[34:35]")
            e(f"global_load_dwordx4 {vr(Q + 4, 4)}, v3, s[34:35] offset:1024")
            ldkv(0, 0)
        else:
            e(f"global_load_dwordx4 {vr(Q + 8 * jj, 4)}, v3, s[34:35]")
            e(f"global_load_dwordx4 {vr(Q + 8 * jj + 4, 4)}, v3, s[34:35] offset:1024")
    ldkv(1, 2048)
    adv(4096)
    ldkv(2, 0)
    adv(2048)
    for r in range(64):
        e(f"v_mov_b32 v{O + r}, 0")
    for r in range(8):
        e(f"v_mov_b32 v{P + r}, 0")
    for r in range(8):
        e(f"v_mov_b32 v{KV + 48 + 8 + r}, 0")
    e("s_barrier")
    e("s_waitcnt vmcnt(14)")
    e(f"v_mfma_f32_32x32x16_bf16 {vr(S, 16)}, {vr(KV, 4)}, {vr(Q, 4)}, 0")
    e(f"v_mfma_f32_32x32x16_bf16 {vr(S, 16)}, {vr(KV + 4, 4)}, {vr(Q + 4, 4)}, {vr(S, 16)}")
    e("s_waitcnt vmcnt(8)")
    e("s_mov_b32 s36, 4")
    e("s_nop 7")
    e("s_nop 3")
    stamp()
    e("k2_loop:")

    def exps(base, lo, hi):
        for r in range(lo, hi):
            e(f"v_exp_f32 v{base + r}, v{base + r}")

    for n in range(16):
        j, tb = n & 3, n >> 2
        Sc, Sn = S + 16 * (n & 1), S + 16 * ((n + 1) & 1)
        jn, tbn = (j + 1) & 3, ((n + 1) >> 2) & 3
        jp, tbp = (j - 1) & 3, ((n - 1) >> 2) & 3
        if j == 3:
            e("s_waitcnt vmcnt(8)")
        e(f"v_mfma_f32_32x32x16_bf16 {vr(Sn, 16)}, {vr(KV + 16 * tbn, 4)}, {vr(Q + 8 * jn, 4)}, 0")
        exps(Sc, 0, 4)
        e(f"v_mfma_f32_32x32x16_bf16 {vr(O + 16 * jp, 16)}, {vr(KV + 16 * tbp + 12, 4)}, {vr(P + 4, 4)}, {vr(O + 16 * jp, 16)}")
        if j == 0:
            ldkv(tbp, 0)
            adv(2048)
        exps(Sc, 4, 8)
        for i in range(4):
            e(f"v_cvt_pk_bf16_f32 v{P + i}, v{Sc + 2 * i}, v{Sc + 2 * i + 1}")
        e(f"v_mfma_f32_32x32x16_bf16 {vr(Sn, 16)}, {vr(KV + 16 * tbn + 4, 4)}, {vr(Q + 8 * jn + 4, 4)}, {vr(Sn, 16)}")
        exps(Sc, 8, 12)
        e(f"v_mfma_f32_32x32x16_bf16 {vr(O + 16 * j, 16)}, {vr(KV + 16 * tb + 8, 4)}, {vr(P, 4)}, {vr(O + 16 * j, 16)}")
        exps(Sc, 12, 16)
        for i in range(4):
            e(f"v_cvt_pk_bf16_f32 v{P + 4 + i}, v{Sc + 8 + 2 * i}, v{Sc + 8 + 2 * i + 1}")
    e("s_sub_u32 s36, s36, 1")
    e("s_cmp_lg_u32 s36, 0")
    e("s_cbranch_scc1 k2_loop")
    stamp()
    e("s_nop 1")
    e(f"v_mfma_f32_32x32x16_bf16 {vr(O + 48, 16)}, {vr(KV + 48 + 12, 4)}, {vr(P + 4, 4)}, {vr(O + 48, 16)}")
    for jj in range(3):
        e(f"s_add_u32 s33, s24, {1 + jj}")
        e("s_and_b32 s33, s33, 3")
        e("s_mul_i32 s33, s33, 12288")
        e(f"v_add_u32 v{5 + jj}, s33, v3")
    for jj in range(3):
        for a in range(4):
            e(f"ds_write_b128 v{5 + jj}, {vr(O + 16 * jj + 4 * a, 4)} offset:{K2_COMB + (2 - jj) * 4096 + a * 1024}")
    e("s_mul_i32 s33, s24, 12288")
    e("v_add_u32 v5, s33, v3")
    e("s_waitcnt lgkmcnt(0)")
    e("s_barrier")
    for p in range(3):
        for a in range(4):
            e(f"ds_read_b128 {vr(O + 16 * p + 4 * a, 4)}, v5 offset:{K2_COMB + p * 4096 + a * 1024}")
    OF = O + 48
    for p in range(3):
        for a in range(4):
            e(f"s_waitcnt lgkmcnt({11 - (p * 4 + a)})")
            for r in range(4):
                e(f"v_add_f32 v{OF + 4 * a + r}, v{OF + 4 * a + r}, v{O + 16 * p + 4 * a + r}")
    stamp()

    def finalize(check):
        e(f"v_mov_b32 v6, v{OF + 12}")
        e(f"v_mov_b32 v7, v{OF + 12}")
        e("s_nop 1")
        e("v_permlane32_swap_b32 v6, v7")
        if check:
            e(f"v_max3_f32 v8, |v{OF}|, |v{OF + 1}|, |v{OF + 2}|")
            for r in range(3, 12, 2):
                e(f"v_max3_f32 v8, v8, |v{OF + r}|, |v{OF + r + 1}|")
            e(f"v_max3_f32 v8, v8, |v{OF + 13}|, |v{OF + 14}|")
            e(f"v_max_f32 v8, v8, |v{OF + 15}|")
            e("s_mov_b32 s40, 0x7b800000")
            e("s_mov_b32 s41, 0x30800000")
            e("s_mov_b32 s42, 0x53800000")
            e("v_cmp_gt_f32 s[44:45], s40, v8")
            e("v_cmp_le_f32 s[46:47], s41, v7")
            e("v_cmp_ge_f32 s[48:49], s42, v7")
            e(f"v_add_f32 v9, v{OF}, v{OF + 1}")
            for r in range(2, 16):
                e(f"v_add_f32 v9, v9, v{OF + r}")
            e("v_cmp_o_f32 s[50:51], v9, v9")
            e("s_and_b64 s[44:45], s[44:45], s[46:47]")
            e("s_and_b64 s[48:49], s[48:49], s[50:51]")
            e("s_and_b64 s[44:45], s[44:45], s[48:49]")
            e("s_cmp_eq_u64 s[44:45], -1")
            e("s_cbranch_scc0 k2_slow")
        e("v_rcp_f32 v7, v7")
        e("s_lshl_b32 s33, s23, 3")
        e("s_lshl_b32 s34, s24, 1")
        e("s_add_u32 s33, s33, s34")
        e("s_mul_i32 s33, s33, 14336")
        e(f"s_add_u32 s33, s33, {OB}")
        add64s(34, 18, 33)
        e("v_bfe_u32 v8, v2, 4, 1")
        e("v_mul_u32_u24 v8, 14336, v8")
        e("v_and_b32 v9, 15, v2")
        e("v_lshl_add_u32 v8, v9, 4, v8")
        e("s_mul_i32 s33, s22, 7")
        e("v_lshrrev_b32 v9, 5, v2")
        e("v_add_u32 v9, s33, v9")
        e("v_lshrrev_b32 v10, 1, v9")
        e("v_lshl_add_u32 v8, v10, 8, v8")
        e("v_and_b32 v9, 1, v9")
        e("v_lshl_add_u32 v8, v9, 3, v8")
        for r in range(16):
            e(f"v_mul_f32 v{OF + r}, v{OF + r}, v7")
        for a in range(4):
            e(f"v_cvt_pk_bf16_f32 v{OF + 4 * a}, v{OF + 4 * a}, v{OF + 4 * a + 1}")
            e(f"v_cvt_pk_bf16_f32 v{OF + 4 * a + 1}, v{OF + 4 * a + 2}, v{OF + 4 * a + 3}")
            if a == 3:
                e("s_mov_b32 exec_hi, 0")
            e(f"global_store_dwordx2 v8, {vr(OF + 4 * a, 2)}, s[34:35] offset:{a * 256}")

    finalize(True)
    stamp()
    if INSTR:
        e("s_mov_b32 exec_hi, -1")
        e("s_waitcnt vmcnt(0)")
    stamp()
    stamp_flush(24)
    e("s_endpgm")
    e("k2_slow:")
    e("s_waitcnt vmcnt(0)")
    e(f"s_add_u32 s27, s25, {KF}")
    e(f"s_add_u32 s26, s25, {VF}")
    add64s(28, 18, 27)
    add64s(30, 18, 26)
    e("v_mov_b32 v10, 0xff800000")
    e("s_mov_b32 s36, 64")
    QS = Q + 24
    e("k2_slow1:")
    e(f"global_load_dwordx4 {vr(KV, 4)}, v4, s[28:29]")
    e(f"global_load_dwordx4 {vr(KV + 4, 4)}, v4, s[28:29] offset:1024")
    e("s_add_u32 s28, s28, 2048")
    e("s_addc_u32 s29, s29, 0")
    e("s_waitcnt vmcnt(0)")
    e(f"v_mfma_f32_32x32x16_bf16 {vr(S, 16)}, {vr(KV, 4)}, {vr(QS, 4)}, 0")
    e(f"v_mfma_f32_32x32x16_bf16 {vr(S, 16)}, {vr(KV + 4, 4)}, {vr(QS + 4, 4)}, {vr(S, 16)}")
    e("s_nop 15")
    e("s_nop 3")
    for r in range(0, 16, 2):
        e(f"v_max3_f32 v10, v10, v{S + r}, v{S + r + 1}")
    e("s_sub_u32 s36, s36, 1")
    e("s_cmp_lg_u32 s36, 0")
    e("s_cbranch_scc1 k2_slow1")
    e("v_mov_b32 v11, v10")
    e("v_mov_b32 v12, v10")
    e("s_nop 1")
    e("v_permlane32_swap_b32 v11, v12")
    e("s_nop 1")
    e("v_max_f32 v10, v11, v12")
    add64s(28, 18, 27)
    for r in range(16):
        e(f"v_mov_b32 v{OF + r}, 0")
    e("s_mov_b32 s36, 64")
    e("k2_slow2:")
    ldkv(0, 0)
    adv(2048)
    e("s_waitcnt vmcnt(0)")
    e(f"v_mfma_f32_32x32x16_bf16 {vr(S, 16)}, {vr(KV, 4)}, {vr(QS, 4)}, 0")
    e(f"v_mfma_f32_32x32x16_bf16 {vr(S, 16)}, {vr(KV + 4, 4)}, {vr(QS + 4, 4)}, {vr(S, 16)}")
    e("s_nop 15")
    e("s_nop 3")
    for r in range(16):
        e(f"v_sub_f32 v{S + r}, v{S + r}, v10")
    exps(S, 0, 16)
    e("s_nop 0")
    for i in range(8):
        e(f"v_cvt_pk_bf16_f32 v{P + i}, v{S + 2 * i}, v{S + 2 * i + 1}")
    e("s_nop 1")
    e(f"v_mfma_f32_32x32x16_bf16 {vr(OF, 16)}, {vr(KV + 8, 4)}, {vr(P, 4)}, {vr(OF, 16)}")
    e(f"v_mfma_f32_32x32x16_bf16 {vr(OF, 16)}, {vr(KV + 12, 4)}, {vr(P + 4, 4)}, {vr(OF, 16)}")
    e("s_sub_u32 s36, s36, 1")
    e("s_cmp_lg_u32 s36, 0")
    e("s_cbranch_scc1 k2_slow2")
    e("s_nop 15")
    e("s_nop 3")
    finalize(False)
    e("s_endpgm")

    e("k2_fft:")
    e("s_sub_u32 s24, s24, 4")
    e("v_and_b32 v4, 15, v2")
    e("v_lshrrev_b32 v5, 4, v2")
    e("s_cmp_ge_u32 s2, 225")
    e("s_cbranch_scc1 k2_aux")
    YR, YI, BC, BS, BN, AC, AS, TC, TS, WW, RE, IM, TMP, FR, FI, FN = 16, 32, 48, 56, 64, 72, 80, 88, 96, 104, 112, 120, 128, 160, 164, 168
    e(f"v_mov_b32 v6, {K2_CNT}")
    e("v_mov_b32 v7, 0")
    e("s_cmp_lg_u32 s24, 0")
    e("s_cbranch_scc1 k2_fft_noinit")
    e("ds_write_b32 v6, v7")
    e("k2_fft_noinit:")
    pc_addr(26, "tab_B64")
    pc_addr(28, "tab_A32")
    pc_addr(30, "tab_TW")
    e("s_mul_i32 s32, s24, 6144")
    add64s(26, 26, 32)
    e("s_lshl_b32 s32, s24, 12")
    add64s(30, 30, 32)
    e("s_lshl_b32 s32, s2, 12")
    e(f"s_add_u32 s33, s32, {YT}")
    e(f"s_add_u32 s38, s32, {UT}")
    e("s_waitcnt lgkmcnt(0)")
    add64s(34, 18, 33)
    add64(36, 34, 224 * 4096)
    add64s(40, 18, 38)
    add64(42, 40, 224 * 4096)
    for mt in range(2):
        for ks in range(2):
            e(f"global_load_dwordx4 {vr(YR + (mt * 2 + ks) * 4, 4)}, v3, s[34:35] offset:{mt * 2048 + ks * 1024}")
    e("s_mov_b32 s44, 1")
    e("s_cmp_eq_u32 s2, 0")
    e("s_cmov_b32 s44, 0")
    e("s_cmp_eq_u32 s2, 224")
    e("s_cmov_b32 s44, 0")
    for r in range(16):
        e(f"v_mov_b32 v{YI + r}, 0")
    e("s_cmp_eq_u32 s44, 0")
    e("s_cbranch_scc1 k2_fft_noim")
    for mt in range(2):
        for ks in range(2):
            e(f"global_load_dwordx4 {vr(YI + (mt * 2 + ks) * 4, 4)}, v3, s[36:37] offset:{mt * 2048 + ks * 1024}")
    e("k2_fft_noim:")
    e("v_add_u32 v6, 4096, v3")
    for ty in range(3):
        for ks in range(2):
            off = (ty * 2 + ks) * 1024
            if off < 4096:
                e(f"global_load_dwordx4 {vr(BC + ty * 8 + ks * 4, 4)}, v3, s[26:27] offset:{off}")
            else:
                e(f"global_load_dwordx4 {vr(BC + ty * 8 + ks * 4, 4)}, v6, s[26:27] offset:{off - 4096}")
    for mt in range(2):
        for cs in range(2):
            e(f"global_load_dwordx4 {vr(TC + cs * 8 + mt * 4, 4)}, v3, s[30:31] offset:{(mt * 2 + cs) * 1024}")
    for ty in range(2):
        for mt in range(2):
            e(f"global_load_dwordx4 {vr(AC + ty * 8 + mt * 4, 4)}, v3, s[28:29] offset:{(ty * 2 + mt) * 1024}")
    e("s_lshl_b32 s32, s2, 13")
    e("s_lshl_b32 s33, s24, 8")
    e("s_add_u32 s32, s32, s33")
    e(f"s_add_u32 s32, s32, {WT}")
    add64s(46, 18, 32)
    e("v_lshlrev_b32 v7, 10, v5")
    e("v_lshl_add_u32 v7, v4, 4, v7")
    e("v_add_u32 v8, 4096, v7")
    e(f"global_load_dwordx4 {vr(WW, 4)}, v7, s[46:47]")
    e(f"global_load_dwordx4 {vr(WW + 4, 4)}, v8, s[46:47]")
    e("s_lshl_b32 s32, s24, 10")
    e(f"s_add_u32 s32, s32, {K2_EX}")
    e("v_lshlrev_b32 v9, 6, v4")
    e("v_lshl_add_u32 v9, v5, 3, v9")
    e("v_add_u32 v9, s32, v9")
    e("v_lshrrev_b32 v10, 3, v4")
    e("v_lshl_add_u32 v9, v10, 5, v9")
    e("v_xor_b32 v10, 32, v9")
    e("v_lshrrev_b32 v11, 2, v4")
    e("v_lshl_add_u32 v11, v5, 3, v11")
    e("v_lshlrev_b32 v11, 6, v11")
    e("v_and_b32 v12, 3, v4")
    e("v_lshl_add_u32 v11, v12, 3, v11")
    e("v_and_b32 v12, 1, v5")
    e("v_lshl_add_u32 v11, v12, 5, v11")
    e(f"v_add_u32 v11, {K2_EX}, v11")
    e("v_xor_b32 v12, 32, v11")
    e("s_lshl_b32 s32, s24, 10")
    e("v_lshlrev_b32 v13, 6, v4")
    e("v_lshl_add_u32 v13, v5, 3, v13")
    e("v_add_u32 v13, s32, v13")
    e("s_waitcnt lgkmcnt(0)")
    e("s_barrier")
    e("s_waitcnt vmcnt(10)")

    def mf(d, a, b, first):
        e(f"v_mfma_f32_16x16x32_bf16 {vr(d, 4)}, {vr(a, 4)}, {vr(b, 4)}, {'0' if first else vr(d, 4)}")

    for step in range(4):
        for mt in range(2):
            ks = step & 1
            if step < 2:
                mf(RE + 4 * mt, YR + (mt * 2 + ks) * 4, BC + 4 * ks, step == 0)
                mf(IM + 4 * mt, YI + (mt * 2 + ks) * 4, BC + 4 * ks, step == 0)
            else:
                mf(RE + 4 * mt, YI + (mt * 2 + ks) * 4, BS + 4 * ks, False)
                mf(IM + 4 * mt, YR + (mt * 2 + ks) * 4, BN + 4 * ks, False)
    e("s_waitcnt vmcnt(6)")
    e("s_nop 7")

    def cmul(sgn):
        for k in range(8):
            e(f"v_mul_f32 v{TMP + k}, v{RE + k}, v{TC + k}")
            e(f"v_mul_f32 v{TMP + 8 + k}, v{IM + k}, v{TC + k}")
        for k in range(8):
            if sgn < 0:
                e(f"v_fma_f32 v{TMP + k}, v{IM + k}, v{TS + k}, v{TMP + k}")
                e(f"v_fma_f32 v{TMP + 8 + k}, -v{RE + k}, v{TS + k}, v{TMP + 8 + k}")
            else:
                e(f"v_fma_f32 v{TMP + k}, -v{IM + k}, v{TS + k}, v{TMP + k}")
                e(f"v_fma_f32 v{TMP + 8 + k}, v{RE + k}, v{TS + k}, v{TMP + 8 + k}")

    def pack3(neg_of_re):
        for i in range(4):
            e(f"v_cvt_pk_bf16_f32 v{FR + i}, v{TMP + 2 * i}, v{TMP + 2 * i + 1}")
            e(f"v_cvt_pk_bf16_f32 v{FI + i}, v{TMP + 8 + 2 * i}, v{TMP + 8 + 2 * i + 1}")
            b = TMP if neg_of_re else TMP + 8
            e(f"v_cvt_pk_bf16_f32 v{FN + i}, -v{b + 2 * i}, -v{b + 2 * i + 1}")

    cmul(-1)
    pack3(True)
    e("s_waitcnt vmcnt(2)")
    e("s_nop 1")
    for mt in range(2):
        mf(RE + 4 * mt, AC + 4 * mt, FR, True)
        mf(IM + 4 * mt, AC + 4 * mt, FI, True)
    for mt in range(2):
        mf(RE + 4 * mt, AS + 4 * mt, FI, False)
        mf(IM + 4 * mt, AS + 4 * mt, FN, False)
    e("s_waitcnt vmcnt(0)")
    for k in range(8):
        e(f"v_lshlrev_b32 v{TMP + 16 + k}, 16, v{WW + k}")
        e(f"v_and_b32 v{TMP + 24 + k}, 0xffff0000, v{WW + k}")
    for k in range(8):
        e(f"v_mul_f32 v{TMP + k}, v{RE + k}, v{TMP + 16 + k}")
        e(f"v_mul_f32 v{TMP + 8 + k}, v{IM + k}, v{TMP + 16 + k}")
    for k in range(8):
        e(f"v_fma_f32 v{TMP + k}, -v{IM + k}, v{TMP + 24 + k}, v{TMP + k}")
        e(f"v_fma_f32 v{TMP + 8 + k}, v{RE + k}, v{TMP + 24 + k}, v{TMP + 8 + k}")
    pack3(False)
    e("s_nop 1")
    for mt in range(2):
        mf(RE + 4 * mt, AC + 4 * mt, FR, True)
        mf(IM + 4 * mt, AC + 4 * mt, FI, True)
    for mt in range(2):
        mf(RE + 4 * mt, AS + 4 * mt, FN, False)
        mf(IM + 4 * mt, AS + 4 * mt, FR, False)
    e("s_nop 7")
    e("s_nop 0")
    cmul(+1)
    for part in range(2):
        for mt in range(2):
            b = TMP + 8 * part + 4 * mt
            e(f"v_cvt_pk_bf16_f32 v{b}, v{b}, v{b + 1}")
            e(f"v_cvt_pk_bf16_f32 v{b + 1}, v{b + 2}, v{b + 3}")
            e(f"ds_write_b64 v{9 + mt}, {vr(b, 2)} offset:{part * 4096}")
    e(f"v_mov_b32 v6, {K2_CNT}")
    e("v_mov_b32 v7, 1")
    e("s_waitcnt lgkmcnt(0)")
    e("s_mov_b64 exec, 1")
    e("ds_add_u32 v6, v7")
    e("s_mov_b64 exec, -1")
    e("k2_fft_spin:")
    e("ds_read_b32 v7, v6")
    e("s_waitcnt lgkmcnt(0)")
    e("v_readfirstlane_b32 s32, v7")
    e("s_cmp_ge_u32 s32, 4")
    e("s_cbranch_scc1 k2_fft_go")
    e("s_sleep 1")
    e("s_branch k2_fft_spin")
    e("k2_fft_go:")
    for part in range(2):
        for mt in range(2):
            for ks in range(2):
                b = YR + ((part * 2 + mt) * 2 + ks) * 4
                for t2 in range(2):
                    e(f"ds_read_b64_tr_b16 {vr(b + 2 * t2, 2)}, v{11 + mt} offset:{part * 4096 + ks * 2048 + t2 * 256}")
    e("s_waitcnt lgkmcnt(0)")

    def af(part, mt, ks): return YR + ((part * 2 + mt) * 2 + ks) * 4
    for step in range(4):
        ks = step & 1
        for mt in range(2):
            if step < 2:
                mf(RE + 4 * mt, af(0, mt, ks), BC + 4 * ks, step == 0)
                mf(IM + 4 * mt, af(1, mt, ks), BC + 4 * ks, step == 0)
            else:
                mf(RE + 4 * mt, af(1, mt, ks), BN + 4 * ks, False)
                mf(IM + 4 * mt, af(0, mt, ks), BS + 4 * ks, False)
    e("s_nop 7")
    e("s_nop 0")
    for mt in range(2):
        b = RE + 4 * mt
        e(f"v_cvt_pk_bf16_f32 v{b}, v{b}, v{b + 1}")
        e(f"v_cvt_pk_bf16_f32 v{b + 1}, v{b + 2}, v{b + 3}")
        e(f"global_store_dwordx2 v13, {vr(b, 2)}, s[40:41] offset:{mt * 32}")
    e("s_cmp_eq_u32 s44, 0")
    e("s_cbranch_scc1 k2_end")
    for mt in range(2):
        b = IM + 4 * mt
        e(f"v_cvt_pk_bf16_f32 v{b}, v{b}, v{b + 1}")
        e(f"v_cvt_pk_bf16_f32 v{b + 1}, v{b + 2}, v{b + 3}")
        e(f"global_store_dwordx2 v13, {vr(b, 2)}, s[42:43] offset:{mt * 32}")
    e("s_endpgm")

    e("k2_aux:")
    e("s_load_dwordx2 s[4:5], s[0:1], 0")
    e("s_load_dwordx4 s[8:11], s[0:1], 40")
    e("s_sub_u32 s25, s2, 225")
    e("s_lshl_b32 s25, s25, 2")
    e("s_add_u32 s25, s25, s24")
    e("s_barrier")
    e("s_waitcnt lgkmcnt(0)")
    e("v_mul_u32_u24 v6, 8*896, v5")
    e("v_lshl_add_u32 v6, v4, 1, v6")
    e("v_add_u32 v7, 4*896, v6")
    e("s_mov_b32 s26, s25")
    e("k2_aux_wo:")
    e("s_mul_i32 s27, s26, 4682")
    e("s_lshr_b32 s27, s27, 16")
    e("s_mul_i32 s28, s27, 14")
    e("s_sub_u32 s28, s26, s28")
    e(f"s_mul_i32 s28, s28, {32 * 896}")
    e("s_lshl_b32 s27, s27, 5")
    e("s_add_u32 s28, s28, s27")
    add64s(30, 8, 28)
    for j in range(8):
        e(f"global_load_ushort v{16 + j}, v{6 + (j >> 2)}, s[30:31] offset:{(j & 3) * 896}")
    e("s_lshl_b32 s27, s26, 10")
    e(f"s_add_u32 s27, s27, {WOT}")
    add64s(32, 18, 27)
    e("s_waitcnt vmcnt(0)")
    for j in range(4):
        e(f"v_lshl_or_b32 v{24 + j}, v{17 + 2 * j}, 16, v{16 + 2 * j}")
    e("global_store_dwordx4 v3, v[24:27], s[32:33]")
    e("s_add_u32 s26, s26, 124")
    e("s_cmp_lt_u32 s26, 392")
    e("s_cbranch_scc1 k2_aux_wo")
    e("s_cmp_ge_u32 s25, 64")
    e("s_cbranch_scc1 k2_end")
    e(f"s_mul_i32 s26, s25, {32 * 896}")
    add64s(30, 4, 26)
    e("v_mul_u32_u24 v6, 896, v4")
    e("v_lshl_add_u32 v6, v5, 4, v6")
    e(f"v_add_u32 v7, {16 * 896}, v6")
    e("v_lshlrev_b32 v8, 4, v5")
    for ks in range(14):
        e(f"global_load_dwordx4 {vr(32 + ks * 12, 4)}, v6, s[30:31] offset:{ks * 64}")
        e(f"global_load_dwordx4 {vr(36 + ks * 12, 4)}, v7, s[30:31] offset:{ks * 64}")
        e(f"global_load_dwordx4 {vr(40 + ks * 12, 4)}, v8, s[10:11] offset:{ks * 64}")
    e("s_waitcnt vmcnt(0)")
    for ks in range(14):
        for t in range(2):
            mf(16 + 4 * t, 32 + ks * 12 + 4 * t, 40 + ks * 12, ks == 0)
    e("s_lshl_b32 s26, s25, 7")
    e(f"s_add_u32 s26, s26, {GATE}")
    add64s(32, 18, 26)
    e(f"s_mov_b32 s27, {f32_bits(-math.log2(math.e)):#x}")
    e("s_nop 7")
    for r in range(8):
        e(f"v_mul_f32 v{16 + r}, s27, v{16 + r}")
    for r in range(8):
        e(f"v_exp_f32 v{16 + r}, v{16 + r}")
    e("s_nop 0")
    for r in range(8):
        e(f"v_add_f32 v{16 + r}, 1.0, v{16 + r}")
    for r in range(8):
        e(f"v_rcp_f32 v{16 + r}, v{16 + r}")
    e("s_nop 0")
    e("global_store_dwordx4 v8, v[16:19], s[32:33]")
    e("global_store_dwordx4 v8, v[20:23], s[32:33] offset:64")
    e("k2_end:")
    e("s_endpgm")
    return descriptor(name, 216)
```

```python
from gen import *
import gen

K3_U = 0
K3_O = 57344
K3_X = 114688
K3_T = 131072
K3_LDS = 139264


def k3():
    name = "k3_kernel"
    header(name)
    gen._st[0] = 0
    AF, ACC, BFR = 16, 72, 88
    e("s_cmp_ge_u32 s2, 224")
    e("s_cbranch_scc1 k3_end")
    stamp()
    e("s_load_dwordx2 s[18:19], s[0:1], 72")
    e("s_load_dwordx2 s[16:17], s[0:1], 56")
    e("v_lshrrev_b32 v1, 6, v0")
    e("v_and_b32 v2, 63, v0")
    e("v_readfirstlane_b32 s24, v1")
    e("v_lshlrev_b32 v3, 4, v2")
    e("v_and_b32 v4, 15, v2")
    e("v_lshrrev_b32 v5, 4, v2")
    e("s_and_b32 s20, s2, 7")
    e("s_lshr_b32 s21, s2, 3")
    e("s_mul_i32 s22, s21, 37")
    e("s_lshr_b32 s22, s22, 8")
    e("s_mul_i32 s23, s22, 7")
    e("s_sub_u32 s23, s21, s23")
    e("s_lshl_b32 s20, s20, 2")
    e("s_add_u32 s22, s22, s20")
    e("s_and_b32 s25, s24, 3")
    e("s_lshr_b32 s26, s24, 2")
    e("v_lshrrev_b32 v6, 3, v2")
    e("v_lshlrev_b32 v6, 12, v6")
    e("v_bfe_u32 v7, v2, 4, 1")
    e("s_and_b32 s27, s24, 1")
    e("s_lshl_b32 s27, s27, 1")
    e("v_or_b32 v7, s27, v7")
    e("v_lshlrev_b32 v7, 1, v7")
    e("v_and_b32 v8, 7, v2")
    e("v_xor_b32 v7, v7, v8")
    e("v_lshl_add_u32 v6, v7, 4, v6")
    e("s_waitcnt lgkmcnt(0)")
    e("s_mov_b32 s28, s18")
    e("s_mov_b32 s29, s19")
    e("s_mov_b32 s30, 0x1000000")
    e("s_mov_b32 s31, 0x00020000")
    e("s_lshl_b32 s32, s24, 15")
    e("s_lshl_b32 s33, s22, 7")
    e("s_add_u32 s32, s32, s33")
    e(f"s_add_u32 s32, s32, {UT}")
    e("s_lshl_b32 s33, s22, 2")
    e("s_add_u32 s33, s33, s25")
    e("s_mul_i32 s33, s33, 14336")
    e("s_lshl_b32 s34, s26, 10")
    e("s_add_u32 s33, s33, s34")
    e(f"s_add_u32 s33, s33, {OB}")
    e("s_lshl_b32 s35, s24, 10")
    e("s_mul_i32 s36, s25, 14336")
    e("s_add_u32 s36, s36, s34")
    e(f"s_add_u32 s36, s36, {K3_O}")
    pc_addr(38, "tab_G")
    add64(40, 18, WOT)
    e("s_cmp_eq_u32 s26, 0")
    e("s_cselect_b32 s38, s38, s40")
    e("s_cselect_b32 s39, s39, s41")
    e("s_lshl_b32 s40, s23, 2")
    e("s_add_u32 s40, s40, s25")
    e("s_mul_i32 s40, s40, 14336")
    add64s(38, 38, 40)
    for ee in range(7):
        e(f"s_add_u32 m0, s35, {K3_U + ee * 8192}")
        e(f"s_add_u32 s41, s32, {ee * 8 * 32768}")
        e("buffer_load_dwordx4 v6, s[28:31], s41 offen lds")
        e(f"s_add_u32 m0, s36, {ee * 2048}")
        e(f"s_add_u32 s41, s33, {ee * 2048}")
        e("buffer_load_dwordx4 v3, s[28:31], s41 offen lds")
        for ks in (2 * ee, 2 * ee + 1):
            if ks and ks % 4 == 0:
                e("s_add_u32 s38, s38, 4096")
                e("s_addc_u32 s39, s39, 0")
            e(f"global_load_dwordx4 {vr(AF + ks * 4, 4)}, v3, s[38:39] offset:{(ks % 4) * 1024}")
    e("s_lshl_b32 s41, s22, 8")
    e(f"s_add_u32 s41, s41, {GATE}")
    add64s(42, 18, 41)
    e("v_lshlrev_b32 v7, 2, v4")
    for rt in range(4):
        e(f"global_load_dword v{12 + rt}, v7, s[42:43] offset:{rt * 64}")
    stamp()
    e("s_cmp_eq_u32 s26, 1")
    e("s_cbranch_scc1 k3_opart")
    e("v_lshrrev_b32 v7, 2, v4")
    e("v_lshl_add_u32 v7, v5, 3, v7")
    e("v_lshlrev_b32 v7, 7, v7")
    e("v_and_b32 v8, 3, v4")
    e("v_lshl_add_u32 v7, v8, 3, v7")
    e("v_lshrrev_b32 v8, 3, v4")
    e("v_and_b32 v9, 1, v5")
    e("v_lshl_or_b32 v8, v9, 1, v8")
    e("v_lshl_add_u32 v8, v8, 5, v7")
    e("v_xor_b32 v9, 32, v8")
    e("v_xor_b32 v10, 64, v8")
    e("v_xor_b32 v11, 96, v8")

    def compute(part):
        lg = Cnt("lgkmcnt", 15)
        tk = {}

        def rd(ks):
            st = ks & 1
            for rt in range(4):
                b = BFR + (st * 4 + rt) * 4
                if part == 0:
                    for t2 in range(2):
                        e(f"ds_read_b64_tr_b16 {vr(b + 2 * t2, 2)}, v{8 + rt} offset:{K3_U + ks * 4096 + t2 * 512}")
                    tk[(ks, rt)] = lg.issue(2)
                else:
                    e(f"ds_read_b128 {vr(b, 4)}, v8 offset:{rt * 14336 + ks * 1024}")
                    tk[(ks, rt)] = lg.issue(1)

        bounds = [(0, 4, 2), (4, 8, 4), (8, 12, 6), (12, 14, 7)]
        for (k0, k1, ne) in bounds:
            e(f"s_waitcnt vmcnt({(7 - ne) * 4 + 4})")
            e("s_barrier")
            stamp()
            rd(k0)
            for ks in range(k0, k1):
                if ks + 1 < k1:
                    rd(ks + 1)
                for rt in range(4):
                    lg.wait(tk[(ks, rt)])
                    b = BFR + ((ks & 1) * 4 + rt) * 4
                    acc = vr(ACC + 4 * rt, 4)
                    e(f"v_mfma_f32_16x16x32_bf16 {acc}, {vr(AF + ks * 4, 4)}, {vr(b, 4)}, {'0' if ks == 0 else acc}")

    compute(0)
    stamp()
    e("s_lshl_b32 s41, s25, 12")
    e(f"s_add_u32 s41, s41, {K3_X}")
    e("v_add_u32 v7, s41, v3")
    e("s_barrier")
    for rt in range(4):
        e(f"ds_read_b128 {vr(BFR + 4 * rt, 4)}, v7 offset:{rt * 1024}")
    e("s_lshl_b32 s41, s25, 5")
    e(f"s_add_u32 s41, s41, {K3_T}")
    e("v_lshlrev_b32 v8, 7, v4")
    e("v_lshl_add_u32 v8, v5, 3, v8")
    e("v_add_u32 v8, s41, v8")
    e("s_waitcnt vmcnt(0)")
    for rt in range(4):
        e(f"s_waitcnt lgkmcnt({3 - rt})" if rt < 3 else "s_waitcnt lgkmcnt(3)")
        for r in range(4):
            a, b = ACC + 4 * rt + r, BFR + 4 * rt + r
            e(f"v_sub_f32 v{a}, v{a}, v{b}")
            e(f"v_fma_f32 v{a}, v{12 + rt}, v{a}, v{b}")
        a = ACC + 4 * rt
        e(f"v_cvt_pk_bf16_f32 v{a}, v{a}, v{a + 1}")
        e(f"v_cvt_pk_bf16_f32 v{a + 1}, v{a + 2}, v{a + 3}")
        e(f"ds_write_b64 v8, {vr(a, 2)} offset:{rt * 2048}")
    e("s_branch k3_final")
    e("k3_opart:")
    gen._st[0] = 2
    e(f"v_add_u32 v8, {K3_O}, v3")
    compute(1)
    stamp()
    e("s_lshl_b32 s41, s25, 12")
    e(f"s_add_u32 s41, s41, {K3_X}")
    e("v_add_u32 v7, s41, v3")
    e("s_nop 7")
    for rt in range(4):
        e(f"ds_write_b128 v7, {vr(ACC + 4 * rt, 4)} offset:{rt * 1024}")
    e("s_waitcnt lgkmcnt(0)")
    e("s_barrier")
    e("k3_final:")
    e("s_lshl_b32 s41, s24, 10")
    e(f"s_add_u32 s41, s41, {K3_T}")
    e("v_add_u32 v7, s41, v3")
    e("v_lshrrev_b32 v9, 3, v2")
    e("v_mul_u32_u24 v9, 896, v9")
    e("v_and_b32 v10, 7, v2")
    e("v_lshl_add_u32 v9, v10, 4, v9")
    e("s_lshl_b32 s41, s22, 3")
    e("s_add_u32 s41, s41, s24")
    e(f"s_mul_i32 s41, s41, {8 * 896}")
    e("s_lshl_b32 s42, s23, 7")
    e("s_add_u32 s41, s41, s42")
    add64s(42, 16, 41)
    e("s_waitcnt lgkmcnt(0)")
    e("s_barrier")
    e("ds_read_b128 v[16:19], v7")
    e("s_waitcnt lgkmcnt(0)")
    e("global_store_dwordx4 v9, v[16:19], s[42:43]")
    stamp()
    if INSTR:
        e("s_waitcnt vmcnt(0)")
    stamp()
    stamp_flush(24)
    e("k3_end:")
    e("s_endpgm")
    return descriptor(name, 120)
```

```python
import math, struct, sys
import numpy as np

QF = 0x000000
KF = 0x200000
VF = 0x400000
YT = 0x600000
WT = 0x800000
WOT = 0xA00000
GATE = 0xA80000
OB = 0xB00000
UT = 0xD00000

L = []


def e(s=""):
    L.append("  " + s if s and not s.endswith(":") else s)


def bf16_bits(x):
    u = struct.unpack("<I", struct.pack("<f", float(x)))[0]
    u = (u + 0x7FFF + ((u >> 16) & 1)) >> 16
    return u & 0xFFFF


def f32_bits(x):
    return struct.unpack("<I", struct.pack("<f", float(x)))[0]


def vr(a, n):
    return f"v[{a}:{a + n - 1}]" if n > 1 else f"v{a}"


def header(name):
    e(f".globl {name}")
    e(".p2align 8")
    e(f".type {name},@function")
    e(f"{name}:")


def descriptor(name, vgpr, sgpr=96, accum=None):
    if accum is None:
        accum = (vgpr + 3) // 4 * 4
    return f""".p2align 6
.amdhsa_kernel {name}
  .amdhsa_next_free_vgpr {vgpr}
  .amdhsa_next_free_sgpr {sgpr}
  .amdhsa_accum_offset {accum}
  .amdhsa_group_segment_fixed_size 0
  .amdhsa_kernarg_size 80
  .amdhsa_user_sgpr_count 2
  .amdhsa_user_sgpr_kernarg_segment_ptr 1
  .amdhsa_system_sgpr_workgroup_id_x 1
.end_amdhsa_kernel"""


def add64(dst, src, imm):
    e(f"s_add_u32 s{dst}, s{src}, {imm}")
    e(f"s_addc_u32 s{dst + 1}, s{src + 1}, 0")


def add64s(dst, src, sreg):
    e(f"s_add_u32 s{dst}, s{src}, s{sreg}")
    e(f"s_addc_u32 s{dst + 1}, s{src + 1}, 0")


def csel(dst, tv, fv):
    e(f"s_mov_b32 s{dst}, {fv}")
    e(f"s_cmov_b32 s{dst}, {tv}")


def pc_addr(dst, label):
    e(f"s_getpc_b64 s[{dst}:{dst + 1}]")
    e(f"s_add_u32 s{dst}, s{dst}, {label}@rel32@lo+4")
    e(f"s_addc_u32 s{dst + 1}, s{dst + 1}, {label}@rel32@hi+12")


import os
INSTR = os.environ.get("INSTR", "")
_st = [0]


def stamp():
    if INSTR:
        n = _st[0]
        e("s_memtime s[90:91]")
        e("s_waitcnt lgkmcnt(0)")
        e(f"s_mov_b32 s{70 + n}, s90")
        _st[0] += 1


def stamp_flush(wavereg, nslots=16):
    if INSTR:
        n = _st[0]
        e("s_load_dwordx2 s[90:91], s[0:1], 64")
        e("s_waitcnt lgkmcnt(0)")
        e(f"s_cmp_lg_u32 s{wavereg}, 0")
        e(f"s_cbranch_scc1 stampskip{len(L)}")
        lab = f"stampskip{len(L) - 1}"
        e("s_and_b32 s92, s2, 63")
        e("s_cmp_lg_u32 s92, 5")
        e(f"s_cbranch_scc1 {lab}")
        e("s_lshr_b32 s92, s2, 6")
        e("s_lshl_b32 s92, s92, 6")
        e("v_mov_b32 v1, s92")
        for i in range(n):
            e(f"s_sub_u32 s93, s{70 + i}, s70")
            e("v_mov_b32 v2, s93")
            e(f"global_store_dword v1, v2, s[90:91] offset:{4 * i}")
        e(f"{lab}:")


class Cnt:
    def __init__(self, name, maxv):
        self.name, self.maxv, self.n = name, maxv, 0
        self.done = 0

    def issue(self, k=1):
        self.n += k
        return self.n

    def wait(self, ticket):
        if ticket <= self.done:
            return
        allowed = self.n - ticket
        if allowed > self.maxv:
            allowed = self.maxv
        e(f"s_waitcnt {self.name}({allowed})")
        self.done = self.n - allowed

    def reset(self):
        self.n = 0
        self.done = 0


QSCALE = (28.0 ** -0.5) * math.log2(math.e)


K1_XS = 16384
K1_BS = 14336
K1_BOFF = 5 * K1_XS
K1_LDS = K1_BOFF + 5 * K1_BS


def k1():
    name = "k1_kernel"
    header(name)
    AF = 32
    ACC = 48
    BF = 104
    WJ = 160
    e("s_cmp_ge_u32 s2, 256")
    e("s_cbranch_scc1 k1_end")
    stamp()
    e("s_load_dwordx4 s[4:7], s[0:1], 0")
    e("s_load_dwordx2 s[8:9], s[0:1], 16")
    e("s_load_dwordx2 s[12:13], s[0:1], 32")
    e("s_load_dwordx2 s[18:19], s[0:1], 72")
    e("s_and_b32 s20, s2, 7")
    e("s_lshr_b32 s21, s2, 3")
    e("s_lshr_b32 s22, s20, 1")
    e("s_and_b32 s23, s21, 3")
    e("s_lshl_b32 s23, s23, 2")
    e("s_add_u32 s22, s22, s23")
    e("s_and_b32 s23, s20, 1")
    e("s_lshl_b32 s23, s23, 3")
    e("s_lshr_b32 s24, s21, 2")
    e("s_add_u32 s23, s23, s24")
    e("v_lshrrev_b32 v1, 6, v0")
    e("v_and_b32 v2, 63, v0")
    e("v_readfirstlane_b32 s69, v1")
    e("v_and_b32 v3, 15, v2")
    e("v_lshrrev_b32 v4, 4, v2")
    e("s_and_b32 s24, s69, 3")
    e("s_lshl_b32 s25, s23, 7")
    e("s_lshr_b32 s26, s23, 2")
    e("s_and_b32 s26, s26, 1")
    e("s_lshl_b32 s26, s26, 10")
    e("s_and_b32 s27, s23, 3")
    e("s_lshl_b32 s27, s27, 8")
    e("s_add_u32 s26, s26, s27")
    e("s_lshr_b32 s27, s23, 3")
    e("s_lshl_b32 s27, s27, 4")
    e("s_add_u32 s26, s26, s27")
    e("s_cmp_ge_u32 s22, 12")
    e("s_cselect_b32 s25, s26, s25")
    csel(26, 896, 8 * 896)
    csel(27, 32 * 896, 896)
    e("s_mul_i32 s25, s25, 896")
    e("s_mul_i32 s28, s24, s26")
    e("s_add_u32 s25, s25, s28")
    e("s_lshl_b32 s26, s26, 2")
    e("v_lshrrev_b32 v5, 3, v2")
    e("v_mul_lo_u32 v5, v5, s27")
    e("s_and_b32 s28, s24, 1")
    e("s_lshl_b32 s28, s28, 2")
    e("v_add_u32 v6, s28, v4")
    e("v_and_b32 v7, 7, v2")
    e("v_xor_b32 v6, v6, v7")
    e("v_lshl_add_u32 v5, v6, 4, v5")
    pc_addr(28, "tab_F")
    e("s_waitcnt lgkmcnt(0)")
    e("s_cmp_ge_u32 s22, 12")
    e("s_cselect_b32 s32, s28, s12")
    e("s_cselect_b32 s33, s29, s13")
    csel(34, 401408, 1204224)
    e("s_mov_b32 s35, 0x00020000")
    csel(36, 896, 2688)
    e("s_cselect_b32 s37, 12, 0")
    e("s_sub_u32 s37, s22, s37")
    e("s_mul_i32 s37, s37, 224")
    e("s_mov_b32 s64, s4")
    e("s_mov_b32 s56, s4")
    e("s_mov_b32 s57, s5")
    e("s_mov_b32 s58, 1835008")
    e("s_mov_b32 s59, 0x00020000")
    e("v_mul_u32_u24 v7, 147, v2")
    e("v_lshrrev_b32 v7, 11, v7")
    e("v_mul_u32_u24 v8, 14, v7")
    e("v_sub_u32 v8, v2, v8")
    e("v_mul_lo_u32 v7, v7, s36")
    e("v_lshl_add_u32 v7, v8, 4, v7")
    e("s_lshr_b32 s38, s24, 1")
    e("s_xor_b32 s38, s38, s24")
    e("s_mul_i32 s38, s38, s36")
    e("s_lshl_b32 s38, s38, 2")
    e("s_add_u32 s38, s38, s37")
    e("s_lshl_b32 s39, s36, 4")
    e("s_mul_i32 s40, s24, 896")
    e(f"s_add_u32 s40, s40, {K1_BOFF}")
    e("s_lshl_b32 s41, s24, 10")

    def issue_chunk(c):
        slot = c % 5
        for ee in range(4):
            e(f"s_add_u32 m0, s41, {slot * K1_XS + ee * 4096}")
            e(f"s_add_u32 s42, s25, {c * 128}" if ee == 0 else "s_add_u32 s42, s42, s26")
            e("buffer_load_dwordx4 v5, s[56:59], s42 offen lds")
        e("s_mov_b32 exec_hi, 0x00ffffff")
        for ee in range(4):
            e(f"s_add_u32 m0, s40, {slot * K1_BS + ee * 3584}")
            e("s_nop 0")
            e("buffer_load_dwordx4 v7, s[32:35], s38 offen lds")
            e("s_add_u32 s38, s38, s39")
        e("s_mov_b32 exec_hi, -1")

    e("s_cmp_ge_u32 s69, 4")
    e("s_cbranch_scc1 k1_producer")
    e("v_and_b32 v8, 1, v4")
    e("v_lshl_add_u32 v9, v4, 1, v8")
    e("v_xor_b32 v8, 1, v8")
    e("v_lshl_add_u32 v10, v4, 1, v8")
    e("v_mul_u32_u24 v9, 896, v9")
    e("v_mul_u32_u24 v10, 896, v10")
    e("v_lshrrev_b32 v8, 2, v3")
    e("v_mul_u32_u24 v8, 224, v8")
    e("v_and_b32 v11, 3, v3")
    e("v_lshl_add_u32 v8, v11, 3, v8")
    e(f"v_add_u32 v8, {K1_BOFF}, v8")
    e("v_add_u32 v9, v9, v8")
    e("v_add_u32 v10, v10, v8")
    e("v_lshrrev_b32 v8, 1, v3")
    e("v_xor_b32 v8, v8, v4")
    e("v_lshlrev_b32 v11, 7, v3")
    e("s_lshl_b32 s43, s24, 12")
    e("v_add_u32 v11, s43, v11")
    e("v_lshl_add_u32 v12, v8, 4, v11")
    e("v_xor_b32 v13, 64, v12")
    e(f"v_add_u32 v14, {3 * K1_XS}, v12")
    e(f"v_add_u32 v15, {3 * K1_XS}, v13")
    def trread(slot, kk, jn, st):
        off = slot * K1_BS + kk * 7168 + jn * 32
        b = BF + st * 28 + jn * 4
        e(f"ds_read_b64_tr_b16 {vr(b, 2)}, v9 offset:{off}")
        e(f"ds_read_b64_tr_b16 {vr(b + 2, 2)}, v10 offset:{off}")

    def mainloop(transposed):
        lg = Cnt("lgkmcnt", 15)
        tk = {}

        def rdA(c, kk):
            slot = c % 5
            for t in range(2):
                base = (12 + kk) if slot < 3 else (14 + kk)
                off = (slot if slot < 3 else slot - 3) * K1_XS + t * 2048
                e(f"ds_read_b128 {vr(AF + (kk * 2 + t) * 4, 4)}, v{base} offset:{off}")
                tk[("A", kk, t)] = lg.issue()

        def rdB(c, kk, jn):
            trread(c % 5, kk, jn, kk)
            tk[("B", kk, jn)] = lg.issue(2)

        e("s_barrier")
        stamp()
        rdA(0, 0)
        for jn in range(7):
            rdB(0, 0, jn)
        for c in range(7):
            for kk in range(2):
                nc, nk = (c, 1) if kk == 0 else (c + 1, 0)
                if kk == 1 and c < 6:
                    e("s_barrier")
                    stamp()
                for jn in range(7):
                    lg.wait(max(tk[("A", kk, 0)], tk[("A", kk, 1)], tk[("B", kk, jn)]))
                    for t in range(2):
                        acc = vr(ACC + (t * 7 + jn) * 4, 4)
                        xf = vr(AF + (kk * 2 + t) * 4, 4)
                        bf = vr(BF + kk * 28 + jn * 4, 4)
                        cin = "0" if (c == 0 and kk == 0) else acc
                        if transposed:
                            e(f"v_mfma_f32_16x16x32_bf16 {acc}, {bf}, {xf}, {cin}")
                        else:
                            e(f"v_mfma_f32_16x16x32_bf16 {acc}, {xf}, {bf}, {cin}")
                    if nc < 7:
                        if jn == 0:
                            rdA(nc, nk)
                        rdB(nc, nk, jn)
        e("s_nop 7")

    def wjob_store():
        pass

    STG = 2 * K1_XS

    def readback_qkv(region_sreg):
        e("s_and_b32 s62, s22, 3")
        e("s_lshl_b32 s62, s62, 19")
        e(f"s_add_u32 s{region_sreg}, s{region_sreg}, s62")
        e("s_lshl_b32 s62, s23, 2")
        e("s_add_u32 s62, s62, s24")
        e("s_lshl_b32 s62, s62, 11")
        e(f"s_add_u32 s{region_sreg}, s{region_sreg}, s62")
        add64s(62, 18, region_sreg)
        e("v_lshlrev_b32 v19, 4, v2")
        e("v_add_u32 v18, s43, v19")
        e("s_waitcnt lgkmcnt(0)")
        for n in range(8):
            e(f"ds_read_b128 {vr(BF + n * 4, 4)}, v18 offset:{n * 1024}")
        for hl in range(4):
            if hl:
                e("v_add_u32 v19, 0x20000, v19")
            for n2 in range(2):
                n = hl * 2 + n2
                e(f"s_waitcnt lgkmcnt({7 - n})")
                e(f"global_store_dwordx4 v19, {vr(BF + n * 4, 4)}, s[62:63] offset:{n2 * 1024}")

    e(f"s_lshl_b32 s43, s24, 13")
    e(f"s_add_u32 s43, s43, {STG}")
    e("s_cmp_ge_u32 s22, 8")
    e("s_cbranch_scc1 k1_normal")
    sv = _st[0]
    mainloop(True)
    stamp()
    e("s_cmp_ge_u32 s22, 4")
    csel(64, KF, QF)
    csel(65, "1.0", f"{f32_bits(QSCALE):#x}")
    e("v_lshlrev_b32 v5, 4, v3")
    e("v_add_u32 v5, s43, v5")
    for jn in range(7):
        e(f"v_add_u32 v6, {4 * jn}, v4")
        e("v_mul_u32_u24 v7, 37, v6")
        e("v_lshrrev_b32 v7, 8, v7")
        e("v_mul_u32_u24 v8, 7, v7")
        e("v_sub_u32 v6, v6, v8")
        e("v_lshl_add_u32 v7, v7, 11, v5")
        e("v_lshrrev_b32 v8, 1, v6")
        e("v_lshl_add_u32 v7, v8, 9, v7")
        e("v_and_b32 v6, 1, v6")
        e(f"v_lshl_add_u32 v{20 + jn}, v6, 3, v7")
        for t in range(2):
            a = ACC + (t * 7 + jn) * 4
            for r in range(4):
                e(f"v_mul_f32 v{a + r}, s65, v{a + r}")
            e(f"v_cvt_pk_bf16_f32 v{a}, v{a}, v{a + 1}")
            e(f"v_cvt_pk_bf16_f32 v{a + 1}, v{a + 2}, v{a + 3}")
            e(f"ds_write_b64 v{20 + jn}, {vr(a, 2)} offset:{t * 256}")
    e("v_lshl_add_u32 v6, v4, 11, v5")
    e("v_mov_b32 v8, 0")
    e("v_mov_b32 v9, 0")
    for t in range(2):
        e(f"ds_write_b64 v6, v[8:9] offset:{1536 + 8 + t * 256}")
    wjob_store()
    stamp()
    readback_qkv(64)
    stamp()
    if INSTR: e("s_waitcnt vmcnt(0)")
    stamp()
    stamp_flush(69)
    e("s_endpgm")
    _st[0] = sv
    e("k1_normal:")
    mainloop(False)
    e("s_cmp_ge_u32 s22, 12")
    e("s_cbranch_scc1 k1_f")
    e(f"s_mov_b32 s64, {VF}")
    e("v_lshrrev_b32 v5, 1, v4")
    e("v_lshlrev_b32 v5, 9, v5")
    e("v_and_b32 v6, 1, v4")
    e("v_lshl_add_u32 v5, v6, 3, v5")
    e("v_add_u32 v5, s43, v5")
    for jn in range(7):
        e(f"v_add_u32 v6, {16 * jn}, v3")
        e("v_mul_u32_u24 v7, 147, v6")
        e("v_lshrrev_b32 v7, 12, v7")
        e("v_mul_u32_u24 v8, 28, v7")
        e("v_sub_u32 v6, v6, v8")
        e("v_lshl_add_u32 v7, v7, 11, v5")
        e(f"v_lshl_add_u32 v{20 + jn}, v6, 4, v7")
        for t in range(2):
            a = ACC + (t * 7 + jn) * 4
            e(f"v_cvt_pk_bf16_f32 v{a}, v{a}, v{a + 1}")
            e(f"v_cvt_pk_bf16_f32 v{a + 1}, v{a + 2}, v{a + 3}")
            e(f"ds_write_b64 v{20 + jn}, {vr(a, 2)} offset:{t * 1024}")
    e("v_lshrrev_b32 v6, 3, v3")
    e("v_lshlrev_b32 v6, 9, v6")
    e("v_lshl_add_u32 v6, v4, 11, v6")
    e("v_and_b32 v7, 3, v3")
    e("v_lshl_add_u32 v6, v7, 4, v6")
    e("v_bfe_u32 v7, v3, 2, 1")
    e("v_lshl_add_u32 v6, v7, 3, v6")
    e("v_add_u32 v6, s43, v6")
    e("v_mov_b32 v8, 0x3f803f80")
    e("v_mov_b32 v9, 0x3f803f80")
    for t in range(2):
        e(f"ds_write_b64 v6, v[8:9] offset:{28 * 16 + t * 1024}")
    wjob_store()
    readback_qkv(64)
    e("s_endpgm")
    e("k1_f:")
    e("v_lshlrev_b32 v5, 6, v3")
    e("v_lshl_add_u32 v5, v4, 3, v5")
    e("v_add_u32 v5, s43, v5")
    for jn in range(7):
        for t in range(2):
            a = ACC + (t * 7 + jn) * 4
            e(f"v_cvt_pk_bf16_f32 v{a}, v{a}, v{a + 1}")
            e(f"v_cvt_pk_bf16_f32 v{a + 1}, v{a + 2}, v{a + 3}")
            e(f"ds_write_b64 v5, {vr(a, 2)} offset:{jn * 1024 + t * 32}")
    wjob_store()
    e("s_sub_u32 s64, s22, 12")
    e(f"s_mul_i32 s64, s64, {112 * 4096}")
    e(f"s_add_u32 s64, s64, {YT}")
    e("s_lshl_b32 s62, s23, 8")
    e("s_add_u32 s64, s64, s62")
    e("s_lshl_b32 s62, s24, 6")
    e("s_add_u32 s64, s64, s62")
    add64s(62, 18, 64)
    e("v_lshlrev_b32 v18, 4, v2")
    e("v_add_u32 v18, s43, v18")
    e("v_lshrrev_b32 v19, 2, v2")
    e("v_lshlrev_b32 v19, 12, v19")
    e("v_and_b32 v6, 3, v2")
    e("v_lshl_add_u32 v19, v6, 4, v19")
    e("s_waitcnt lgkmcnt(0)")
    for n in range(7):
        e(f"ds_read_b128 {vr(BF + n * 4, 4)}, v18 offset:{n * 1024}")
    for n in range(7):
        if n:
            e("v_add_u32 v19, 0x10000, v19")
        e(f"s_waitcnt lgkmcnt({6 - n})")
        e(f"global_store_dwordx4 v19, {vr(BF + n * 4, 4)}, s[62:63]")
    e("s_endpgm")
    e("k1_producer:")
    for c in range(2):
        issue_chunk(c)
    e("s_lshl_b32 s44, s2, 2")
    e("s_add_u32 s44, s44, s24")
    e("s_and_b32 s45, s44, 7")
    e("s_lshr_b32 s46, s44, 3")
    e("s_and_b32 s46, s46, 3")
    e("s_lshr_b32 s44, s44, 5")
    e("s_lshl_b32 s46, s46, 6")
    e("v_add_u32 v16, s46, v2")
    e("v_lshlrev_b32 v17, 13, v16")
    e("v_lshlrev_b32 v16, 1, v16")
    e("s_lshl_b32 s46, s45, 8")
    e("s_lshl_b32 s47, s44, 1")
    e("s_add_u32 s46, s46, s47")
    e("s_mul_i32 s46, s46, 450")
    e("s_mov_b32 s48, s6")
    e("s_mov_b32 s49, s7")
    e("s_mov_b32 s50, 921600")
    e("s_mov_b32 s51, 0x00020000")
    e("s_mov_b32 s52, s8")
    e("s_mov_b32 s53, s9")
    e("s_mov_b32 s54, 921600")
    e("s_mov_b32 s55, 0x00020000")
    e("s_lshl_b32 s45, s45, 10")
    e("s_lshl_b32 s44, s44, 5")
    e("s_add_u32 s45, s45, s44")
    e(f"s_add_u32 s45, s45, {WT}")
    add64s(60, 18, 45)

    for c in range(7):
        e(f"s_waitcnt vmcnt({[8, 16, 16, 16, 16, 24, 16][c]})")
        e("s_barrier")
        if c == 0:
            issue_chunk(2)
        if c + 3 < 7:
            issue_chunk(c + 3)
        if c == 4:
            for ee in range(2):
                for r in range(4):
                    e(f"s_add_u32 s47, s46, {(64 * r + ee) * 450}")
                    e(f"buffer_load_ushort v{WJ + ee * 4 + r}, v16, s[48:51], s47 offen")
                    e(f"buffer_load_ushort v{WJ + 8 + ee * 4 + r}, v16, s[52:55], s47 offen")
    e("s_waitcnt vmcnt(0)")
    for r in range(8):
        e(f"v_lshl_or_b32 v{WJ + r}, v{WJ + 8 + r}, 16, v{WJ + r}")
    e(f"global_store_dwordx4 v17, {vr(WJ, 4)}, s[60:61]")
    e(f"global_store_dwordx4 v17, {vr(WJ + 4, 4)}, s[60:61] offset:16")
    e("k1_end:")
    e("s_endpgm")
    return descriptor(name, 176)


def tables():
    T = []
    T.append('.section .rodata,"a"')
    for i in range(448):
        T.append(f".set TC_{i}, {bf16_bits(math.cos(2 * math.pi * i / 448)):#x}")
    sc = 2.0 / (2048 * 448)
    for i in range(448):
        T.append(f".set TG_{i}, {bf16_bits(sc * math.cos(2 * math.pi * i / 448)):#x}")
    T.append(""".altmacro
.macro emitc a
 .short TC_\\a
.endm
.macro emitg a
 .short TG_\\a
.endm
.macro emitgh a
 .short TG_\\a - 0x80
.endm
.p2align 8
tab_F:
.set dd, 0
.rept 448
 .set aa, 0
 .rept 225
  emitc %aa
  .set aa, (aa + dd) % 448
 .endr
 .set aa, (dd + 112) % 448
 .rept 223
  emitc %aa
  .set aa, (aa + dd) % 448
 .endr
 .set dd, dd+1
.endr
.p2align 8
tab_G:
.set ct, 0
.rept 28
 .set ks, 0
 .rept 14
  .set ln, 0
  .rept 64
   .set dc, 16*ct + (ln & 15)
   .set cc, 32*ks + 8*(ln >> 4)
   .rept 8
    .if cc == 0
     emitgh 0
    .elseif cc == 224
     emitgh %((224*dc) % 448)
    .elseif cc < 224
     emitg %((cc*dc) % 448)
    .else
     emitg %(((cc-224)*dc + 112) % 448)
    .endif
    .set cc, cc+1
   .endr
   .set ln, ln+1
  .endr
  .set ks, ks+1
 .endr
 .set ct, ct+1
.endr
.noaltmacro""")
    def emit_u16(vals):
        for i in range(0, len(vals), 16):
            w = [vals[j] | (vals[j + 1] << 16) for j in range(i, min(i + 16, len(vals)), 2)]
            T.append(".long " + ",".join(f"{x:#x}" for x in w))

    def emit_u32(vals):
        for i in range(0, len(vals), 8):
            T.append(".long " + ",".join(f"{x:#x}" for x in vals[i:i + 8]))

    T.append(".p2align 8\ntab_B64:")
    v = []
    for wv in range(4):
        for ty in range(3):
            for ks in range(2):
                for l in range(64):
                    n = 16 * wv + (l & 15)
                    for j in range(8):
                        k = 32 * ks + 8 * (l >> 4) + j
                        ang = 2 * math.pi * ((n * k) % 64) / 64
                        val = math.cos(ang) if ty == 0 else (math.sin(ang) if ty == 1 else -math.sin(ang))
                        if abs(val) < 1e-9: val = 0.0
                        v.append(bf16_bits(val))
    emit_u16(v)
    T.append(".p2align 8\ntab_A32:")
    v = []
    for ty in range(2):
        for mt in range(2):
            for l in range(64):
                m = 16 * mt + (l & 15)
                g = l >> 4
                for j in range(8):
                    n2 = 4 * g + j if j < 4 else 16 + 4 * g + j - 4
                    ang = 2 * math.pi * ((m * n2) % 32) / 32
                    val = math.cos(ang) if ty == 0 else math.sin(ang)
                    if abs(val) < 1e-9: val = 0.0
                    v.append(bf16_bits(val))
    emit_u16(v)
    T.append(".p2align 8\ntab_TW:")
    v = []
    for wv in range(4):
        for mt in range(2):
            for cs in range(2):
                for l in range(64):
                    f1 = 16 * wv + (l & 15)
                    g = l >> 4
                    for r in range(4):
                        n2 = 16 * mt + 4 * g + r
                        ang = 2 * math.pi * ((n2 * f1) % 2048) / 2048
                        v.append(f32_bits(math.cos(ang) if cs == 0 else math.sin(ang)))
    emit_u32(v)
    return "\n".join(T)


def main():
    which = sys.argv[1] if len(sys.argv) > 1 else "123"
    launches = []
    descs = []
    if "1" in which:
        launches.append("; @launch kernel=k1_kernel grid=(256,1,1) block=(512,1,1) lds=153600")
    if "2" in which:
        launches.append("; @launch kernel=k2_kernel grid=(256,1,1) block=(512,1,1) lds=57600")
    if "3" in which:
        launches.append("; @launch kernel=k3_kernel grid=(224,1,1) block=(512,1,1) lds=139264")
    print("\n".join(launches))
    print('.amdgcn_target "amdgcn-amd-amdhsa--gfx950"\n.text')
    if "1" in which:
        descs.append(k1())
    if "2" in which:
        from gen_k2 import k2
        descs.append(k2())
    if "3" in which:
        from gen_k3 import k3
        descs.append(k3())
    print("\n".join(L))
    print(tables())
    print("\n".join(descs))


if __name__ == "__main__":
    import gen
    gen.main()
```

```python
from gen import *
import gen
import os
PREFETCH = int(os.environ.get('PREFETCH', '1'))

K2_COMB = 0
K2_EX = 49152
K2_CNT = 57344
K2_LDS = 57600


def k2():
    name = "k2_kernel"
    header(name)
    gen._st[0] = 0
    e("s_cmp_ge_u32 s2, 256")
    e("s_cbranch_scc1 k2_end")
    stamp()
    prof_start()
    e("s_load_dwordx2 s[18:19], s[0:1], 72")
    e("v_lshrrev_b32 v1, 6, v0")
    e("v_and_b32 v2, 63, v0")
    e("v_readfirstlane_b32 s24, v1")
    e("v_lshlrev_b32 v3, 4, v2")
    e(f"v_mov_b32 v6, {K2_CNT}")
    e("v_mov_b32 v7, 0")
    e("ds_write_b32 v6, v7")
    e("s_waitcnt lgkmcnt(0)")
    e("s_barrier")
    e("s_cmp_ge_u32 s24, 4")
    e("s_cbranch_scc1 k2_fft")
    Q, O, S, P, KV = 16, 48, 112, 144, 152
    e("s_and_b32 s20, s2, 7")
    e("s_lshr_b32 s21, s2, 3")
    e("s_lshl_b32 s22, s20, 1")
    e("s_and_b32 s23, s21, 1")
    e("s_add_u32 s22, s22, s23")
    e("s_lshr_b32 s23, s21, 1")
    e("v_and_b32 v4, 0x33f, v3")
    e("v_bfe_u32 v5, v3, 6, 1")
    e("v_lshl_or_b32 v4, v5, 7, v4")
    e("v_bfe_u32 v5, v3, 7, 1")
    e("v_lshl_or_b32 v4, v5, 6, v4")
    e("s_lshl_b32 s25, s22, 17")
    e("s_lshl_b32 s26, s24, 15")
    e("s_add_u32 s26, s26, s25")
    e(f"s_add_u32 s27, s26, {KF}")
    e(f"s_add_u32 s26, s26, {VF}")
    e("s_waitcnt lgkmcnt(0)")
    add64s(28, 18, 27)
    add64s(30, 18, 26)
    vm = Cnt("vmcnt", 63)

    def ldkv(buf, off):
        b = KV + 16 * buf
        e(f"global_load_dwordx4 {vr(b, 4)}, v4, s[28:29] offset:{off}")
        e(f"global_load_dwordx4 {vr(b + 4, 4)}, v4, s[28:29] offset:{off + 1024}")
        e(f"global_load_dwordx4 {vr(b + 8, 4)}, v3, s[30:31] offset:{off}")
        e(f"global_load_dwordx4 {vr(b + 12, 4)}, v3, s[30:31] offset:{off + 1024}")

    def adv(n):
        e(f"s_add_u32 s28, s28, {n}")
        e("s_addc_u32 s29, s29, 0")
        e(f"s_add_u32 s30, s30, {n}")
        e("s_addc_u32 s31, s31, 0")

    e("s_lshl_b32 s32, s23, 13")
    e("s_add_u32 s32, s32, s25")
    if QF: e(f"s_add_u32 s32, s32, {QF}")
    for jj in range(4):
        e(f"s_add_u32 s33, s24, {1 + jj}")
        e("s_and_b32 s33, s33, 3")
        e("s_lshl_b32 s33, s33, 11")
        e("s_add_u32 s33, s33, s32")
        add64s(34, 18, 33)
        if jj == 0:
            e(f"global_load_dwordx4 {vr(Q, 4)}, v3, s[34:35]")
            e(f"global_load_dwordx4 {vr(Q + 4, 4)}, v3, s[34:35] offset:1024")
            ldkv(0, 0)
        else:
            e(f"global_load_dwordx4 {vr(Q + 8 * jj, 4)}, v3, s[34:35]")
            e(f"global_load_dwordx4 {vr(Q + 8 * jj + 4, 4)}, v3, s[34:35] offset:1024")
    ldkv(1, 2048)
    adv(4096)
    ldkv(2, 0)
    adv(2048)
    for r in range(64):
        e(f"v_mov_b32 v{O + r}, 0")
    for r in range(8):
        e(f"v_mov_b32 v{P + r}, 0")
    for r in range(8):
        e(f"v_mov_b32 v{KV + 48 + 8 + r}, 0")
    e("s_waitcnt vmcnt(14)")
    e(f"v_mfma_f32_32x32x16_bf16 {vr(S, 16)}, {vr(KV, 4)}, {vr(Q, 4)}, 0")
    e(f"v_mfma_f32_32x32x16_bf16 {vr(S, 16)}, {vr(KV + 4, 4)}, {vr(Q + 4, 4)}, {vr(S, 16)}")
    e("s_waitcnt vmcnt(8)")
    e("s_mov_b32 s36, 3")
    for jj in range(3):
        e(f"s_add_u32 s33, s24, {1 + jj}")
        e("s_and_b32 s33, s33, 3")
        e("s_mul_i32 s33, s33, 12288")
        e(f"v_add_u32 v{5 + jj}, s33, v3")
    e("s_nop 3")
    stamp()

    def exps(base, lo, hi):
        for r in range(lo, hi):
            e(f"v_exp_f32 v{base + r}, v{base + r}")

    def iteration(last):
        for n in range(16):
            j, tb = n & 3, n >> 2
            Sc, Sn = S + 16 * (n & 1), S + 16 * ((n + 1) & 1)
            jn, tbn = (j + 1) & 3, ((n + 1) >> 2) & 3
            jp, tbp = (j - 1) & 3, ((n - 1) >> 2) & 3
            doqk = not (last and n == 15)
            if j == 3 and doqk:
                e(f"s_waitcnt vmcnt({8 if not last else [8, 4, 0][tb]})")
            if doqk:
                e(f"v_mfma_f32_32x32x16_bf16 {vr(Sn, 16)}, {vr(KV + 16 * tbn, 4)}, {vr(Q + 8 * jn, 4)}, 0")
            exps(Sc, 0, 4)
            e(f"v_mfma_f32_32x32x16_bf16 {vr(O + 16 * jp, 16)}, {vr(KV + 16 * tbp + 12, 4)}, {vr(P + 4, 4)}, {vr(O + 16 * jp, 16)}")
            if j == 0 and (not last or n == 0):
                ldkv(tbp, 0)
                adv(2048)
            exps(Sc, 4, 8)
            for i in range(4):
                e(f"v_cvt_pk_bf16_f32 v{P + i}, v{Sc + 2 * i}, v{Sc + 2 * i + 1}")
            if doqk:
                e(f"v_mfma_f32_32x32x16_bf16 {vr(Sn, 16)}, {vr(KV + 16 * tbn + 4, 4)}, {vr(Q + 8 * jn + 4, 4)}, {vr(Sn, 16)}")
            exps(Sc, 8, 12)
            e(f"v_mfma_f32_32x32x16_bf16 {vr(O + 16 * j, 16)}, {vr(KV + 16 * tb + 8, 4)}, {vr(P, 4)}, {vr(O + 16 * j, 16)}")
            if last and n >= 13:
                jj = n - 13
                for a in range(4):
                    e(f"ds_write_b128 v{5 + jj}, {vr(O + 16 * jj + 4 * a, 4)} offset:{K2_COMB + (2 - jj) * 4096 + a * 1024}")
            exps(Sc, 12, 16)
            for i in range(4):
                e(f"v_cvt_pk_bf16_f32 v{P + 4 + i}, v{Sc + 8 + 2 * i}, v{Sc + 8 + 2 * i + 1}")

    e("k2_loop:")
    iteration(False)
    e("s_sub_u32 s36, s36, 1")
    e("s_cmp_lg_u32 s36, 0")
    e("s_cbranch_scc1 k2_loop")
    iteration(True)
    stamp()
    e("s_nop 1")
    e(f"v_mfma_f32_32x32x16_bf16 {vr(O + 48, 16)}, {vr(KV + 48 + 12, 4)}, {vr(P + 4, 4)}, {vr(O + 48, 16)}")
    e("s_mul_i32 s33, s24, 12288")
    e("v_add_u32 v5, s33, v3")
    e("s_waitcnt lgkmcnt(0)")
    e("s_barrier")
    for p in range(3):
        for a in range(4):
            e(f"ds_read_b128 {vr(O + 16 * p + 4 * a, 4)}, v5 offset:{K2_COMB + p * 4096 + a * 1024}")
    OF = O + 48
    for p in range(3):
        for a in range(4):
            e(f"s_waitcnt lgkmcnt({11 - (p * 4 + a)})")
            for r in range(4):
                e(f"v_add_f32 v{OF + 4 * a + r}, v{OF + 4 * a + r}, v{O + 16 * p + 4 * a + r}")
    stamp()

    def finalize(check):
        e(f"v_mov_b32 v6, v{OF + 12}")
        e(f"v_mov_b32 v7, v{OF + 12}")
        e("s_nop 1")
        e("v_permlane32_swap_b32 v6, v7")
        if check:
            e(f"v_max3_f32 v8, |v{OF}|, |v{OF + 1}|, |v{OF + 2}|")
            for r in range(3, 12, 2):
                e(f"v_max3_f32 v8, v8, |v{OF + r}|, |v{OF + r + 1}|")
            e(f"v_max3_f32 v8, v8, |v{OF + 13}|, |v{OF + 14}|")
            e(f"v_max_f32 v8, v8, |v{OF + 15}|")
            e("s_mov_b32 s40, 0x7b800000")
            e("s_mov_b32 s41, 0x30800000")
            e("s_mov_b32 s42, 0x53800000")
            e("v_cmp_gt_f32 s[44:45], s40, v8")
            e("v_cmp_le_f32 s[46:47], s41, v7")
            e("v_cmp_ge_f32 s[48:49], s42, v7")
            e(f"v_add_f32 v9, v{OF}, v{OF + 1}")
            for r in range(2, 16):
                e(f"v_add_f32 v9, v9, v{OF + r}")
            e("v_cmp_o_f32 s[50:51], v9, v9")
            e("s_and_b64 s[44:45], s[44:45], s[46:47]")
            e("s_and_b64 s[48:49], s[48:49], s[50:51]")
            e("s_and_b64 s[44:45], s[44:45], s[48:49]")
            e("s_cmp_eq_u64 s[44:45], -1")
            e("s_cbranch_scc0 k2_slow")
        e("v_rcp_f32 v7, v7")
        e("s_lshl_b32 s33, s23, 3")
        e("s_lshl_b32 s34, s24, 1")
        e("s_add_u32 s33, s33, s34")
        e("s_mul_i32 s33, s33, 14336")
        e(f"s_add_u32 s33, s33, {OB}")
        add64s(34, 18, 33)
        e("v_bfe_u32 v8, v2, 4, 1")
        e("v_mul_u32_u24 v8, 14336, v8")
        e("v_and_b32 v9, 15, v2")
        e("v_lshl_add_u32 v8, v9, 4, v8")
        e("s_mul_i32 s33, s22, 7")
        e("v_lshrrev_b32 v9, 5, v2")
        e("v_add_u32 v9, s33, v9")
        e("v_lshrrev_b32 v10, 1, v9")
        e("v_lshl_add_u32 v8, v10, 8, v8")
        e("v_and_b32 v9, 1, v9")
        e("v_lshl_add_u32 v8, v9, 3, v8")
        for r in range(16):
            e(f"v_mul_f32 v{OF + r}, v{OF + r}, v7")
        for a in range(4):
            e(f"v_cvt_pk_bf16_f32 v{OF + 4 * a}, v{OF + 4 * a}, v{OF + 4 * a + 1}")
            e(f"v_cvt_pk_bf16_f32 v{OF + 4 * a + 1}, v{OF + 4 * a + 2}, v{OF + 4 * a + 3}")
            if a == 3:
                e("s_mov_b32 exec_hi, 0")
            e(f"global_store_dwordx2 v8, {vr(OF + 4 * a, 2)}, s[34:35] offset:{a * 256}")

    finalize(True)
    stamp()
    if INSTR:
        e("s_mov_b32 exec_hi, -1")
        e("s_waitcnt vmcnt(0)")
    stamp()
    stamp_flush(24)
    prof_end(1)
    e("s_endpgm")
    e("k2_slow:")
    e("s_waitcnt vmcnt(0)")
    e(f"s_add_u32 s27, s25, {KF}")
    e(f"s_add_u32 s26, s25, {VF}")
    add64s(28, 18, 27)
    add64s(30, 18, 26)
    e("v_mov_b32 v10, 0xff800000")
    e("s_mov_b32 s36, 64")
    QS = Q + 24
    e("k2_slow1:")
    e(f"global_load_dwordx4 {vr(KV, 4)}, v4, s[28:29]")
    e(f"global_load_dwordx4 {vr(KV + 4, 4)}, v4, s[28:29] offset:1024")
    e("s_add_u32 s28, s28, 2048")
    e("s_addc_u32 s29, s29, 0")
    e("s_waitcnt vmcnt(0)")
    e(f"v_mfma_f32_32x32x16_bf16 {vr(S, 16)}, {vr(KV, 4)}, {vr(QS, 4)}, 0")
    e(f"v_mfma_f32_32x32x16_bf16 {vr(S, 16)}, {vr(KV + 4, 4)}, {vr(QS + 4, 4)}, {vr(S, 16)}")
    e("s_nop 15")
    e("s_nop 3")
    for r in range(0, 16, 2):
        e(f"v_max3_f32 v10, v10, v{S + r}, v{S + r + 1}")
    e("s_sub_u32 s36, s36, 1")
    e("s_cmp_lg_u32 s36, 0")
    e("s_cbranch_scc1 k2_slow1")
    e("v_mov_b32 v11, v10")
    e("v_mov_b32 v12, v10")
    e("s_nop 1")
    e("v_permlane32_swap_b32 v11, v12")
    e("s_nop 1")
    e("v_max_f32 v10, v11, v12")
    add64s(28, 18, 27)
    for r in range(16):
        e(f"v_mov_b32 v{OF + r}, 0")
    e("s_mov_b32 s36, 64")
    e("k2_slow2:")
    ldkv(0, 0)
    adv(2048)
    e("s_waitcnt vmcnt(0)")
    e(f"v_mfma_f32_32x32x16_bf16 {vr(S, 16)}, {vr(KV, 4)}, {vr(QS, 4)}, 0")
    e(f"v_mfma_f32_32x32x16_bf16 {vr(S, 16)}, {vr(KV + 4, 4)}, {vr(QS + 4, 4)}, {vr(S, 16)}")
    e("s_nop 15")
    e("s_nop 3")
    for r in range(16):
        e(f"v_sub_f32 v{S + r}, v{S + r}, v10")
    exps(S, 0, 16)
    e("s_nop 0")
    for i in range(8):
        e(f"v_cvt_pk_bf16_f32 v{P + i}, v{S + 2 * i}, v{S + 2 * i + 1}")
    e("s_nop 1")
    e(f"v_mfma_f32_32x32x16_bf16 {vr(OF, 16)}, {vr(KV + 8, 4)}, {vr(P, 4)}, {vr(OF, 16)}")
    e(f"v_mfma_f32_32x32x16_bf16 {vr(OF, 16)}, {vr(KV + 12, 4)}, {vr(P + 4, 4)}, {vr(OF, 16)}")
    e("s_sub_u32 s36, s36, 1")
    e("s_cmp_lg_u32 s36, 0")
    e("s_cbranch_scc1 k2_slow2")
    e("s_nop 15")
    e("s_nop 3")
    finalize(False)
    prof_end(1)
    e("s_endpgm")

    e("k2_fft:")
    e("s_sub_u32 s24, s24, 4")
    e("v_and_b32 v4, 15, v2")
    e("v_lshrrev_b32 v5, 4, v2")
    e("s_cmp_ge_u32 s2, 225")
    e("s_cbranch_scc1 k2_aux")
    e("s_setprio 3")
    YR, YI, BC, BS, BN, AC, AS, TC, TS, WW, RE, IM, TMP, FR, FI, FN = 16, 32, 48, 56, 64, 72, 80, 88, 96, 104, 112, 120, 128, 160, 164, 168
    pc_addr(26, "tab_B64")
    pc_addr(28, "tab_A32")
    pc_addr(30, "tab_TW")
    e("s_mul_i32 s32, s24, 6144")
    add64s(26, 26, 32)
    e("s_lshl_b32 s32, s24, 12")
    add64s(30, 30, 32)
    e("s_lshl_b32 s32, s2, 12")
    e(f"s_add_u32 s33, s32, {YT}")
    e(f"s_add_u32 s38, s32, {UT}")
    e("s_waitcnt lgkmcnt(0)")
    add64s(34, 18, 33)
    add64(36, 34, 224 * 4096)
    add64s(40, 18, 38)
    add64(42, 40, 224 * 4096)
    for mt in range(2):
        for ks in range(2):
            e(f"global_load_dwordx4 {vr(YR + (mt * 2 + ks) * 4, 4)}, v3, s[34:35] offset:{mt * 2048 + ks * 1024}")
    e("s_mov_b32 s44, 1")
    e("s_cmp_eq_u32 s2, 0")
    e("s_cmov_b32 s44, 0")
    e("s_cmp_eq_u32 s2, 224")
    e("s_cmov_b32 s44, 0")
    for r in range(16):
        e(f"v_mov_b32 v{YI + r}, 0")
    e("s_cmp_eq_u32 s44, 0")
    e("s_cbranch_scc1 k2_fft_noim")
    for mt in range(2):
        for ks in range(2):
            e(f"global_load_dwordx4 {vr(YI + (mt * 2 + ks) * 4, 4)}, v3, s[36:37] offset:{mt * 2048 + ks * 1024}")
    e("k2_fft_noim:")
    e("v_add_u32 v6, 4096, v3")
    for ty in range(3):
        for ks in range(2):
            off = (ty * 2 + ks) * 1024
            if off < 4096:
                e(f"global_load_dwordx4 {vr(BC + ty * 8 + ks * 4, 4)}, v3, s[26:27] offset:{off}")
            else:
                e(f"global_load_dwordx4 {vr(BC + ty * 8 + ks * 4, 4)}, v6, s[26:27] offset:{off - 4096}")
    for mt in range(2):
        for cs in range(2):
            e(f"global_load_dwordx4 {vr(TC + cs * 8 + mt * 4, 4)}, v3, s[30:31] offset:{(mt * 2 + cs) * 1024}")
    for ty in range(2):
        for mt in range(2):
            e(f"global_load_dwordx4 {vr(AC + ty * 8 + mt * 4, 4)}, v3, s[28:29] offset:{(ty * 2 + mt) * 1024}")
    e("s_lshl_b32 s32, s2, 13")
    e("s_lshl_b32 s33, s24, 8")
    e("s_add_u32 s32, s32, s33")
    e(f"s_add_u32 s32, s32, {WT}")
    add64s(46, 18, 32)
    e("v_lshlrev_b32 v7, 10, v5")
    e("v_lshl_add_u32 v7, v4, 4, v7")
    e("v_add_u32 v8, 4096, v7")
    e(f"global_load_dwordx4 {vr(WW, 4)}, v7, s[46:47]")
    e(f"global_load_dwordx4 {vr(WW + 4, 4)}, v8, s[46:47]")
    e("s_lshl_b32 s32, s24, 10")
    e(f"s_add_u32 s32, s32, {K2_EX}")
    e("v_lshlrev_b32 v9, 6, v4")
    e("v_lshl_add_u32 v9, v5, 3, v9")
    e("v_add_u32 v9, s32, v9")
    e("v_lshrrev_b32 v10, 3, v4")
    e("v_lshl_add_u32 v9, v10, 5, v9")
    e("v_xor_b32 v10, 32, v9")
    e("v_lshrrev_b32 v11, 2, v4")
    e("v_lshl_add_u32 v11, v5, 3, v11")
    e("v_lshlrev_b32 v11, 6, v11")
    e("v_and_b32 v12, 3, v4")
    e("v_lshl_add_u32 v11, v12, 3, v11")
    e("v_and_b32 v12, 1, v5")
    e("v_lshl_add_u32 v11, v12, 5, v11")
    e(f"v_add_u32 v11, {K2_EX}, v11")
    e("v_xor_b32 v12, 32, v11")
    e("s_lshl_b32 s32, s24, 10")
    e("v_lshlrev_b32 v13, 6, v4")
    e("v_lshl_add_u32 v13, v5, 3, v13")
    e("v_add_u32 v13, s32, v13")
    e("s_waitcnt vmcnt(10)")

    def mf(d, a, b, first):
        e(f"v_mfma_f32_16x16x32_bf16 {vr(d, 4)}, {vr(a, 4)}, {vr(b, 4)}, {'0' if first else vr(d, 4)}")

    for step in range(4):
        for mt in range(2):
            ks = step & 1
            if step < 2:
                mf(RE + 4 * mt, YR + (mt * 2 + ks) * 4, BC + 4 * ks, step == 0)
                mf(IM + 4 * mt, YI + (mt * 2 + ks) * 4, BC + 4 * ks, step == 0)
            else:
                mf(RE + 4 * mt, YI + (mt * 2 + ks) * 4, BS + 4 * ks, False)
                mf(IM + 4 * mt, YR + (mt * 2 + ks) * 4, BN + 4 * ks, False)
    e("s_waitcnt vmcnt(6)")
    e("s_nop 7")

    def cmul(sgn):
        for k in range(8):
            e(f"v_mul_f32 v{TMP + k}, v{RE + k}, v{TC + k}")
            e(f"v_mul_f32 v{TMP + 8 + k}, v{IM + k}, v{TC + k}")
        for k in range(8):
            if sgn < 0:
                e(f"v_fma_f32 v{TMP + k}, v{IM + k}, v{TS + k}, v{TMP + k}")
                e(f"v_fma_f32 v{TMP + 8 + k}, -v{RE + k}, v{TS + k}, v{TMP + 8 + k}")
            else:
                e(f"v_fma_f32 v{TMP + k}, -v{IM + k}, v{TS + k}, v{TMP + k}")
                e(f"v_fma_f32 v{TMP + 8 + k}, v{RE + k}, v{TS + k}, v{TMP + 8 + k}")

    def pack3(neg_of_re):
        for i in range(4):
            e(f"v_cvt_pk_bf16_f32 v{FR + i}, v{TMP + 2 * i}, v{TMP + 2 * i + 1}")
            e(f"v_cvt_pk_bf16_f32 v{FI + i}, v{TMP + 8 + 2 * i}, v{TMP + 8 + 2 * i + 1}")
            b = TMP if neg_of_re else TMP + 8
            e(f"v_cvt_pk_bf16_f32 v{FN + i}, -v{b + 2 * i}, -v{b + 2 * i + 1}")

    cmul(-1)
    pack3(True)
    e("s_waitcnt vmcnt(2)")
    e("s_nop 1")
    for mt in range(2):
        mf(RE + 4 * mt, AC + 4 * mt, FR, True)
        mf(IM + 4 * mt, AC + 4 * mt, FI, True)
    for mt in range(2):
        mf(RE + 4 * mt, AS + 4 * mt, FI, False)
        mf(IM + 4 * mt, AS + 4 * mt, FN, False)
    e("s_waitcnt vmcnt(0)")
    for k in range(8):
        e(f"v_lshlrev_b32 v{TMP + 16 + k}, 16, v{WW + k}")
        e(f"v_and_b32 v{TMP + 24 + k}, 0xffff0000, v{WW + k}")
    for k in range(8):
        e(f"v_mul_f32 v{TMP + k}, v{RE + k}, v{TMP + 16 + k}")
        e(f"v_mul_f32 v{TMP + 8 + k}, v{IM + k}, v{TMP + 16 + k}")
    for k in range(8):
        e(f"v_fma_f32 v{TMP + k}, -v{IM + k}, v{TMP + 24 + k}, v{TMP + k}")
        e(f"v_fma_f32 v{TMP + 8 + k}, v{RE + k}, v{TMP + 24 + k}, v{TMP + 8 + k}")
    pack3(False)
    e("s_nop 1")
    for mt in range(2):
        mf(RE + 4 * mt, AC + 4 * mt, FR, True)
        mf(IM + 4 * mt, AC + 4 * mt, FI, True)
    for mt in range(2):
        mf(RE + 4 * mt, AS + 4 * mt, FN, False)
        mf(IM + 4 * mt, AS + 4 * mt, FR, False)
    e("s_nop 7")
    e("s_nop 0")
    cmul(+1)
    for part in range(2):
        for mt in range(2):
            b = TMP + 8 * part + 4 * mt
            e(f"v_cvt_pk_bf16_f32 v{b}, v{b}, v{b + 1}")
            e(f"v_cvt_pk_bf16_f32 v{b + 1}, v{b + 2}, v{b + 3}")
            e(f"ds_write_b64 v{9 + mt}, {vr(b, 2)} offset:{part * 4096}")
    e(f"v_mov_b32 v6, {K2_CNT}")
    e("v_mov_b32 v7, 1")
    e("s_waitcnt lgkmcnt(0)")
    e("s_mov_b64 exec, 1")
    e("ds_add_u32 v6, v7")
    e("s_mov_b64 exec, -1")
    e("k2_fft_spin:")
    e("ds_read_b32 v7, v6")
    e("s_waitcnt lgkmcnt(0)")
    e("v_readfirstlane_b32 s32, v7")
    e("s_cmp_ge_u32 s32, 4")
    e("s_cbranch_scc1 k2_fft_go")
    e("s_sleep 1")
    e("s_branch k2_fft_spin")
    e("k2_fft_go:")
    for part in range(2):
        for mt in range(2):
            for ks in range(2):
                b = YR + ((part * 2 + mt) * 2 + ks) * 4
                for t2 in range(2):
                    e(f"ds_read_b64_tr_b16 {vr(b + 2 * t2, 2)}, v{11 + mt} offset:{part * 4096 + ks * 2048 + t2 * 256}")
    e("s_waitcnt lgkmcnt(0)")

    def af(part, mt, ks): return YR + ((part * 2 + mt) * 2 + ks) * 4
    for step in range(4):
        ks = step & 1
        for mt in range(2):
            if step < 2:
                mf(RE + 4 * mt, af(0, mt, ks), BC + 4 * ks, step == 0)
                mf(IM + 4 * mt, af(1, mt, ks), BC + 4 * ks, step == 0)
            else:
                mf(RE + 4 * mt, af(1, mt, ks), BN + 4 * ks, False)
                mf(IM + 4 * mt, af(0, mt, ks), BS + 4 * ks, False)
    e("s_nop 7")
    e("s_nop 0")
    for mt in range(2):
        b = RE + 4 * mt
        e(f"v_cvt_pk_bf16_f32 v{b}, v{b}, v{b + 1}")
        e(f"v_cvt_pk_bf16_f32 v{b + 1}, v{b + 2}, v{b + 3}")
        e(f"global_store_dwordx2 v13, {vr(b, 2)}, s[40:41] offset:{mt * 32}")
    e("s_cmp_eq_u32 s44, 0")
    e("s_cbranch_scc1 k2_prefetch")
    for mt in range(2):
        b = IM + 4 * mt
        e(f"v_cvt_pk_bf16_f32 v{b}, v{b}, v{b + 1}")
        e(f"v_cvt_pk_bf16_f32 v{b + 1}, v{b + 2}, v{b + 3}")
        e(f"global_store_dwordx2 v13, {vr(b, 2)}, s[42:43] offset:{mt * 32}")
    e("s_branch k2_prefetch")

    e("k2_aux:")
    e("s_load_dwordx2 s[4:5], s[0:1], 0")
    e("s_load_dwordx4 s[8:11], s[0:1], 40")
    e("s_sub_u32 s25, s2, 225")
    e("s_lshl_b32 s25, s25, 2")
    e("s_add_u32 s25, s25, s24")
    e("s_waitcnt lgkmcnt(0)")
    e("v_mul_u32_u24 v6, 8*896, v5")
    e("v_lshl_add_u32 v6, v4, 1, v6")
    e("v_add_u32 v7, 4*896, v6")
    for it in range(4):
        e(f"s_add_u32 s26, s25, {124 * it}")
        e("s_min_u32 s26, s26, 391")
        e("s_mul_i32 s27, s26, 4682")
        e("s_lshr_b32 s27, s27, 16")
        e("s_mul_i32 s28, s27, 14")
        e("s_sub_u32 s28, s26, s28")
        e(f"s_mul_i32 s28, s28, {32 * 896}")
        e("s_lshl_b32 s27, s27, 5")
        e("s_add_u32 s28, s28, s27")
        add64s(30, 8, 28)
        for j in range(8):
            e(f"global_load_ushort v{16 + it * 8 + j}, v{6 + (j >> 2)}, s[30:31] offset:{(j & 3) * 896}")
        e("s_lshl_b32 s27, s26, 10")
        e(f"s_add_u32 s27, s27, {WOT}")
        add64s(48 + 2 * it, 18, 27)
    for it in range(4):
        e(f"s_waitcnt vmcnt({24 - 8 * it + it})")
        for j in range(4):
            e(f"v_lshl_or_b32 v{200 + it * 4 + j}, v{17 + it * 8 + 2 * j}, 16, v{16 + it * 8 + 2 * j}")
        e(f"global_store_dwordx4 v3, {vr(200 + it * 4, 4)}, s[{48 + 2 * it}:{49 + 2 * it}]")
    e("k2_prefetch:")
    if PREFETCH:
        pc_addr(52, "tab_G")
        e(f"s_mov_b32 s54, 401408")
        e("s_mov_b32 s55, 0x00020000")
        e("s_lshr_b32 s26, s2, 3")
        e("s_lshl_b32 s26, s26, 2")
        e("s_add_u32 s26, s26, s24")
        e("s_lshl_b32 s27, s26, 12")
        for i in range(4):
            e(f"buffer_load_dwordx4 {vr(176 + 4 * i, 4)}, v3, s[52:55], s27 offen offset:{i * 1024}")
        pc_addr(56, "k3_kernel")
        e("s_mov_b32 s58, k3_code_end-k3_kernel")
        e("s_mov_b32 s59, 0x00020000")
        e("s_lshl_b32 s27, s26, 10")
        e(f"buffer_load_dwordx4 {vr(192, 4)}, v3, s[56:59], s27 offen")
    prof_end(1)
    e("s_endpgm")
    e("k2_end:")
    e("s_endpgm")
    return descriptor(name, 216)
```

```python
from gen import *
import gen

K3_U = 0
K3_O = 57344
K3_X = 114688
K3_T = 131072
K3_LDS = 139264


def k3():
    name = "k3_kernel"
    header(name)
    gen._st[0] = 0
    AF, ACC, BFR = 16, 72, 88
    e("s_cmp_ge_u32 s2, 224")
    e("s_cbranch_scc1 k3_end")
    stamp()
    prof_start()
    e("s_load_dwordx2 s[18:19], s[0:1], 72")
    e("s_load_dwordx2 s[16:17], s[0:1], 56")
    e("v_lshrrev_b32 v1, 6, v0")
    e("v_and_b32 v2, 63, v0")
    e("v_readfirstlane_b32 s24, v1")
    e("v_lshlrev_b32 v3, 4, v2")
    e("v_and_b32 v4, 15, v2")
    e("v_lshrrev_b32 v5, 4, v2")
    e("s_and_b32 s20, s2, 7")
    e("s_lshr_b32 s21, s2, 3")
    e("s_mul_i32 s22, s21, 37")
    e("s_lshr_b32 s22, s22, 8")
    e("s_mul_i32 s23, s22, 7")
    e("s_sub_u32 s23, s21, s23")
    e("s_lshl_b32 s20, s20, 2")
    e("s_add_u32 s22, s22, s20")
    e("s_and_b32 s25, s24, 3")
    e("s_lshr_b32 s26, s24, 2")
    e("v_lshrrev_b32 v6, 3, v2")
    e("v_lshlrev_b32 v6, 12, v6")
    e("v_bfe_u32 v7, v2, 4, 1")
    e("s_and_b32 s27, s24, 1")
    e("s_lshl_b32 s27, s27, 1")
    e("v_or_b32 v7, s27, v7")
    e("v_lshlrev_b32 v7, 1, v7")
    e("v_and_b32 v8, 7, v2")
    e("v_xor_b32 v7, v7, v8")
    e("v_lshl_add_u32 v6, v7, 4, v6")
    e("s_waitcnt lgkmcnt(0)")
    e("s_mov_b32 s28, s18")
    e("s_mov_b32 s29, s19")
    e("s_mov_b32 s30, 0x1000000")
    e("s_mov_b32 s31, 0x00020000")
    e("s_lshl_b32 s32, s24, 15")
    e("s_lshl_b32 s33, s22, 7")
    e("s_add_u32 s32, s32, s33")
    e(f"s_add_u32 s32, s32, {UT}")
    e("s_lshl_b32 s33, s22, 2")
    e("s_add_u32 s33, s33, s25")
    e("s_mul_i32 s33, s33, 14336")
    e("s_lshl_b32 s34, s26, 10")
    e("s_add_u32 s33, s33, s34")
    e(f"s_add_u32 s33, s33, {OB}")
    e("s_lshl_b32 s35, s24, 10")
    e("s_mul_i32 s36, s25, 14336")
    e("s_add_u32 s36, s36, s34")
    e(f"s_add_u32 s36, s36, {K3_O}")
    pc_addr(38, "tab_G")
    add64(40, 18, WOT)
    e("s_cmp_eq_u32 s26, 0")
    e("s_cselect_b32 s38, s38, s40")
    e("s_cselect_b32 s39, s39, s41")
    e("s_lshl_b32 s40, s23, 2")
    e("s_add_u32 s40, s40, s25")
    e("s_mul_i32 s40, s40, 14336")
    add64s(38, 38, 40)
    for ee in range(7):
        e(f"s_add_u32 m0, s35, {K3_U + ee * 8192}")
        e(f"s_add_u32 s41, s32, {ee * 8 * 32768}")
        e("buffer_load_dwordx4 v6, s[28:31], s41 offen lds")
        e(f"s_add_u32 m0, s36, {ee * 2048}")
        e(f"s_add_u32 s41, s33, {ee * 2048}")
        e("buffer_load_dwordx4 v3, s[28:31], s41 offen lds")
        for ks in (2 * ee, 2 * ee + 1):
            if ks and ks % 4 == 0:
                e("s_add_u32 s38, s38, 4096")
                e("s_addc_u32 s39, s39, 0")
            e(f"global_load_dwordx4 {vr(AF + ks * 4, 4)}, v3, s[38:39] offset:{(ks % 4) * 1024}")
    e("s_lshl_b32 s41, s22, 8")
    e(f"s_add_u32 s41, s41, {GATE}")
    add64s(42, 18, 41)
    e("v_lshlrev_b32 v7, 2, v4")
    for rt in range(4):
        e(f"global_load_dword v{12 + rt}, v7, s[42:43] offset:{rt * 64}")
    stamp()
    e("s_cmp_eq_u32 s26, 1")
    e("s_cbranch_scc1 k3_opart")
    e("v_lshrrev_b32 v7, 2, v4")
    e("v_lshl_add_u32 v7, v5, 3, v7")
    e("v_lshlrev_b32 v7, 7, v7")
    e("v_and_b32 v8, 3, v4")
    e("v_lshl_add_u32 v7, v8, 3, v7")
    e("v_lshrrev_b32 v8, 3, v4")
    e("v_and_b32 v9, 1, v5")
    e("v_lshl_or_b32 v8, v9, 1, v8")
    e("v_lshl_add_u32 v8, v8, 5, v7")
    e("v_xor_b32 v9, 32, v8")
    e("v_xor_b32 v10, 64, v8")
    e("v_xor_b32 v11, 96, v8")

    def compute(part):
        lg = Cnt("lgkmcnt", 15)
        tk = {}

        def rd(ks):
            st = ks & 1
            for rt in range(4):
                b = BFR + (st * 4 + rt) * 4
                if part == 0:
                    for t2 in range(2):
                        e(f"ds_read_b64_tr_b16 {vr(b + 2 * t2, 2)}, v{8 + rt} offset:{K3_U + ks * 4096 + t2 * 512}")
                    tk[(ks, rt)] = lg.issue(2)
                else:
                    e(f"ds_read_b128 {vr(b, 4)}, v8 offset:{rt * 14336 + ks * 1024}")
                    tk[(ks, rt)] = lg.issue(1)

        bounds = [(0, 4, 2), (4, 8, 4), (8, 12, 6), (12, 14, 7)]
        for (k0, k1, ne) in bounds:
            e(f"s_waitcnt vmcnt({(7 - ne) * 4 + 4})")
            e("s_barrier")
            stamp()
            rd(k0)
            for ks in range(k0, k1):
                if ks + 1 < k1:
                    rd(ks + 1)
                for rt in range(4):
                    lg.wait(tk[(ks, rt)])
                    b = BFR + ((ks & 1) * 4 + rt) * 4
                    acc = vr(ACC + 4 * rt, 4)
                    e(f"v_mfma_f32_16x16x32_bf16 {acc}, {vr(AF + ks * 4, 4)}, {vr(b, 4)}, {'0' if ks == 0 else acc}")

    compute(0)
    stamp()
    e("s_lshl_b32 s41, s25, 12")
    e(f"s_add_u32 s41, s41, {K3_X}")
    e("v_add_u32 v7, s41, v3")
    e("s_barrier")
    for rt in range(4):
        e(f"ds_read_b128 {vr(BFR + 4 * rt, 4)}, v7 offset:{rt * 1024}")
    e("s_lshl_b32 s41, s25, 5")
    e(f"s_add_u32 s41, s41, {K3_T}")
    e("v_lshlrev_b32 v8, 7, v4")
    e("v_lshl_add_u32 v8, v5, 3, v8")
    e("v_add_u32 v8, s41, v8")
    e("s_waitcnt vmcnt(0)")
    for rt in range(4):
        e(f"s_waitcnt lgkmcnt({3 - rt})" if rt < 3 else "s_waitcnt lgkmcnt(3)")
        for r in range(4):
            a, b = ACC + 4 * rt + r, BFR + 4 * rt + r
            e(f"v_sub_f32 v{a}, v{a}, v{b}")
            e(f"v_fma_f32 v{a}, v{12 + rt}, v{a}, v{b}")
        a = ACC + 4 * rt
        e(f"v_cvt_pk_bf16_f32 v{a}, v{a}, v{a + 1}")
        e(f"v_cvt_pk_bf16_f32 v{a + 1}, v{a + 2}, v{a + 3}")
        e(f"ds_write_b64 v8, {vr(a, 2)} offset:{rt * 2048}")
    e("s_branch k3_final")
    e("k3_opart:")
    gen._st[0] = 2
    e(f"v_add_u32 v8, {K3_O}, v3")
    compute(1)
    stamp()
    e("s_lshl_b32 s41, s25, 12")
    e(f"s_add_u32 s41, s41, {K3_X}")
    e("v_add_u32 v7, s41, v3")
    e("s_nop 7")
    for rt in range(4):
        e(f"ds_write_b128 v7, {vr(ACC + 4 * rt, 4)} offset:{rt * 1024}")
    e("s_waitcnt lgkmcnt(0)")
    e("s_barrier")
    e("k3_final:")
    e("s_lshl_b32 s41, s24, 10")
    e(f"s_add_u32 s41, s41, {K3_T}")
    e("v_add_u32 v7, s41, v3")
    e("v_lshrrev_b32 v9, 3, v2")
    e("v_mul_u32_u24 v9, 896, v9")
    e("v_and_b32 v10, 7, v2")
    e("v_lshl_add_u32 v9, v10, 4, v9")
    e("s_lshl_b32 s41, s22, 3")
    e("s_add_u32 s41, s41, s24")
    e(f"s_mul_i32 s41, s41, {8 * 896}")
    e("s_lshl_b32 s42, s23, 7")
    e("s_add_u32 s41, s41, s42")
    add64s(42, 16, 41)
    e("s_waitcnt lgkmcnt(0)")
    e("s_barrier")
    e("ds_read_b128 v[16:19], v7")
    e("s_waitcnt lgkmcnt(0)")
    e("global_store_dwordx4 v9, v[16:19], s[42:43]")
    stamp()
    if INSTR:
        e("s_waitcnt vmcnt(0)")
    stamp()
    stamp_flush(24)
    prof_end(2)
    e("s_endpgm")
    e("k3_end:")
    e("s_endpgm")
    e("k3_code_end:")
    return descriptor(name, 120)
```

```python
import math, struct, sys
import numpy as np

QF = 0x000000
KF = 0x200000
VF = 0x400000
YT = 0x600000
WT = 0x800000
WOT = 0xA00000
GATE = 0xA80000
OB = 0xB00000
UT = 0xD00000

L = []


def e(s=""):
    L.append("  " + s if s and not s.endswith(":") else s)


def bf16_bits(x):
    u = struct.unpack("<I", struct.pack("<f", float(x)))[0]
    u = (u + 0x7FFF + ((u >> 16) & 1)) >> 16
    return u & 0xFFFF


def f32_bits(x):
    return struct.unpack("<I", struct.pack("<f", float(x)))[0]


def vr(a, n):
    return f"v[{a}:{a + n - 1}]" if n > 1 else f"v{a}"


def header(name):
    e(f".globl {name}")
    e(".p2align 8")
    e(f".type {name},@function")
    e(f"{name}:")


def descriptor(name, vgpr, sgpr=96, accum=None):
    if INSTR:
        vgpr = 256
    if accum is None:
        accum = (vgpr + 3) // 4 * 4
    return f""".p2align 6
.amdhsa_kernel {name}
  .amdhsa_next_free_vgpr {vgpr}
  .amdhsa_next_free_sgpr {sgpr}
  .amdhsa_accum_offset {accum}
  .amdhsa_group_segment_fixed_size 0
  .amdhsa_kernarg_size 80
  .amdhsa_user_sgpr_count 2
  .amdhsa_user_sgpr_kernarg_segment_ptr 1
  .amdhsa_system_sgpr_workgroup_id_x 1
.end_amdhsa_kernel"""


def add64(dst, src, imm):
    e(f"s_add_u32 s{dst}, s{src}, {imm}")
    e(f"s_addc_u32 s{dst + 1}, s{src + 1}, 0")


def add64s(dst, src, sreg):
    e(f"s_add_u32 s{dst}, s{src}, s{sreg}")
    e(f"s_addc_u32 s{dst + 1}, s{src + 1}, 0")


def csel(dst, tv, fv):
    e(f"s_mov_b32 s{dst}, {fv}")
    e(f"s_cmov_b32 s{dst}, {tv}")


def pc_addr(dst, label):
    e(f"s_getpc_b64 s[{dst}:{dst + 1}]")
    e(f"s_add_u32 s{dst}, s{dst}, {label}@rel32@lo+4")
    e(f"s_addc_u32 s{dst + 1}, s{dst + 1}, {label}@rel32@hi+12")


import os
INSTR = os.environ.get("INSTR", "")
K1PF = int(os.environ.get("K1PF", "0"))
_st = [0]


def stamp():
    if INSTR:
        n = _st[0]
        e("s_memtime s[90:91]")
        e("s_waitcnt lgkmcnt(0)")
        e(f"s_mov_b32 s{70 + n}, s90")
        _st[0] += 1


def stamp_flush(wavereg, nslots=16):
    if INSTR:
        n = _st[0]
        e("s_load_dwordx2 s[90:91], s[0:1], 64")
        e("s_waitcnt lgkmcnt(0)")
        e(f"s_cmp_lg_u32 s{wavereg}, 0")
        e(f"s_cbranch_scc1 stampskip{len(L)}")
        lab = f"stampskip{len(L) - 1}"
        e("s_and_b32 s92, s2, 63")
        e("s_cmp_lg_u32 s92, 5")
        e(f"s_cbranch_scc1 {lab}")
        e("s_lshr_b32 s92, s2, 6")
        e("s_lshl_b32 s92, s92, 6")
        e("v_mov_b32 v1, s92")
        for i in range(n):
            e(f"s_sub_u32 s93, s{70 + i}, s70")
            e("v_mov_b32 v2, s93")
            e(f"global_store_dword v1, v2, s[90:91] offset:{4 * i}")
        e(f"{lab}:")


PROF = 0xF00000


def prof_start():
    if INSTR:
        e("s_memrealtime s[94:95]")
        e("v_lshrrev_b32 v255, 6, v0")


def prof_end(kidx):
    if INSTR:
        e("s_mov_b64 exec, -1")
        e("s_waitcnt vmcnt(0) lgkmcnt(0)")
        e("s_memrealtime s[90:91]")
        e("s_waitcnt lgkmcnt(0)")
        e("v_mov_b32 v252, s94")
        e("v_mov_b32 v253, s90")
        e("s_lshl_b32 s92, s2, 6")
        e(f"s_add_u32 s92, s92, {PROF + kidx * 65536}")
        e("v_lshlrev_b32 v254, 3, v255")
        e("v_add_u32 v254, s92, v254")
        e("global_store_dwordx2 v254, v[252:253], s[18:19]")


class Cnt:
    def __init__(self, name, maxv):
        self.name, self.maxv, self.n = name, maxv, 0
        self.done = 0

    def issue(self, k=1):
        self.n += k
        return self.n

    def wait(self, ticket):
        if ticket <= self.done:
            return
        allowed = self.n - ticket
        if allowed > self.maxv:
            allowed = self.maxv
        e(f"s_waitcnt {self.name}({allowed})")
        self.done = self.n - allowed

    def reset(self):
        self.n = 0
        self.done = 0


QSCALE = (28.0 ** -0.5) * math.log2(math.e)


K1_XS = 16384
K1_BS = 14336
K1_BOFF = 5 * K1_XS
K1_LDS = K1_BOFF + 5 * K1_BS


def k1():
    name = "k1_kernel"
    header(name)
    AF = 32
    ACC = 48
    BF = 104
    RB = 160
    e("s_cmp_ge_u32 s2, 256")
    e("s_cbranch_scc1 k1_end")
    stamp()
    prof_start()
    e("s_load_dwordx4 s[4:7], s[0:1], 0")
    e("s_load_dwordx2 s[12:13], s[0:1], 32")
    e("s_load_dwordx2 s[8:9], s[0:1], 16")
    e("s_load_dwordx2 s[18:19], s[0:1], 72")
    e("s_load_dwordx2 s[14:15], s[0:1], 48")
    e("s_and_b32 s20, s2, 7")
    e("s_lshr_b32 s21, s2, 3")
    e("s_lshr_b32 s22, s20, 1")
    e("s_and_b32 s23, s21, 3")
    e("s_lshl_b32 s23, s23, 2")
    e("s_add_u32 s22, s22, s23")
    e("s_and_b32 s23, s20, 1")
    e("s_lshl_b32 s23, s23, 3")
    e("s_lshr_b32 s24, s21, 2")
    e("s_add_u32 s23, s23, s24")
    e("v_lshrrev_b32 v1, 6, v0")
    e("v_and_b32 v2, 63, v0")
    e("v_readfirstlane_b32 s69, v1")
    e("v_and_b32 v3, 15, v2")
    e("v_lshrrev_b32 v4, 4, v2")
    e("s_and_b32 s24, s69, 3")
    e("s_cmp_lt_u32 s69, 4")
    e("s_cbranch_scc1 k1_consumer")
    e("s_lshl_b32 s25, s23, 7")
    e("s_lshr_b32 s26, s23, 2")
    e("s_and_b32 s26, s26, 1")
    e("s_lshl_b32 s26, s26, 10")
    e("s_and_b32 s27, s23, 3")
    e("s_lshl_b32 s27, s27, 8")
    e("s_add_u32 s26, s26, s27")
    e("s_lshr_b32 s27, s23, 3")
    e("s_lshl_b32 s27, s27, 4")
    e("s_add_u32 s26, s26, s27")
    e("s_cmp_ge_u32 s22, 12")
    e("s_cselect_b32 s25, s26, s25")
    csel(26, 896, 8 * 896)
    csel(27, 32 * 896, 896)
    csel(34, 401408, 1204224)
    csel(36, 896, 2688)
    e("s_cselect_b32 s37, 12, 0")
    e("s_mul_i32 s25, s25, 896")
    e("s_mul_i32 s28, s24, s26")
    e("s_add_u32 s25, s25, s28")
    e("s_lshl_b32 s26, s26, 2")
    e("v_lshrrev_b32 v5, 3, v2")
    e("v_mul_lo_u32 v5, v5, s27")
    e("s_and_b32 s28, s24, 1")
    e("s_lshl_b32 s28, s28, 2")
    e("v_add_u32 v6, s28, v4")
    e("v_and_b32 v7, 7, v2")
    e("v_xor_b32 v6, v6, v7")
    e("v_lshl_add_u32 v5, v6, 4, v5")
    e("s_mov_b32 s35, 0x00020000")
    e("s_sub_u32 s37, s22, s37")
    e("s_mul_i32 s37, s37, 224")
    e("s_mov_b32 s58, 1835008")
    e("s_mov_b32 s59, 0x00020000")
    e("v_mul_u32_u24 v7, 147, v2")
    e("v_lshrrev_b32 v7, 11, v7")
    e("v_mul_u32_u24 v8, 14, v7")
    e("v_sub_u32 v8, v2, v8")
    e("v_mul_lo_u32 v7, v7, s36")
    e("v_lshl_add_u32 v7, v8, 4, v7")
    e("s_lshr_b32 s38, s24, 1")
    e("s_xor_b32 s38, s38, s24")
    e("s_mul_i32 s38, s38, s36")
    e("s_lshl_b32 s38, s38, 2")
    e("s_add_u32 s38, s38, s37")
    e("s_lshl_b32 s39, s36, 4")
    e("s_mul_i32 s40, s24, 896")
    e(f"s_add_u32 s40, s40, {K1_BOFF}")
    e("s_lshl_b32 s41, s24, 10")
    pc_addr(28, "tab_F")
    e("s_waitcnt lgkmcnt(0)")
    e("s_cmp_ge_u32 s22, 12")
    e("s_cselect_b32 s32, s28, s12")
    e("s_cselect_b32 s33, s29, s13")
    e("s_mov_b32 s56, s4")
    e("s_mov_b32 s57, s5")
    vm = Cnt("vmcnt", 63)
    ck = {}

    def issue_chunk(c):
        slot = c % 5
        for ee in range(4):
            e(f"s_add_u32 m0, s41, {slot * K1_XS + ee * 4096}")
            e(f"s_add_u32 s42, s25, {c * 128}" if ee == 0 else "s_add_u32 s42, s42, s26")
            e("buffer_load_dwordx4 v5, s[56:59], s42 offen lds")
        e("s_mov_b32 exec_hi, 0x00ffffff")
        for ee in range(4):
            e(f"s_add_u32 m0, s40, {slot * K1_BS + ee * 3584}")
            e("s_nop 0")
            e("buffer_load_dwordx4 v7, s[32:35], s38 offen lds")
            e("s_add_u32 s38, s38, s39")
        e("s_mov_b32 exec_hi, -1")
        ck[c] = vm.issue(8)

    issue_chunk(0)
    issue_chunk(1)
    WJ = 32
    e("s_lshl_b32 s44, s2, 2")
    e("s_add_u32 s44, s44, s24")
    e("s_and_b32 s45, s44, 7")
    e("s_lshr_b32 s46, s44, 3")
    e("s_and_b32 s46, s46, 3")
    e("s_lshr_b32 s44, s44, 5")
    e("s_lshl_b32 s46, s46, 6")
    e("v_add_u32 v16, s46, v2")
    e("v_lshlrev_b32 v17, 13, v16")
    e("v_lshlrev_b32 v16, 1, v16")
    e("s_lshl_b32 s46, s45, 8")
    e("s_lshl_b32 s47, s44, 1")
    e("s_add_u32 s46, s46, s47")
    e("s_mul_i32 s46, s46, 450")
    e("s_mov_b32 s48, s6")
    e("s_mov_b32 s49, s7")
    e("s_mov_b32 s50, 921600")
    e("s_mov_b32 s51, 0x00020000")
    e("s_mov_b32 s52, s8")
    e("s_mov_b32 s53, s9")
    e("s_mov_b32 s54, 921600")
    e("s_mov_b32 s55, 0x00020000")
    e("s_lshl_b32 s45, s45, 10")
    e("s_lshl_b32 s44, s44, 5")
    e("s_add_u32 s45, s45, s44")
    e(f"s_add_u32 s45, s45, {WT}")
    add64s(60, 18, 45)
    GW = 48
    e("v_lshlrev_b32 v18, 3, v3")
    for c in range(7):
        e(f"global_load_dwordx2 {vr(GW + 2 * c, 2)}, v18, s[14:15] offset:{c * 128}")
    tgw = vm.issue(7)
    e("s_and_b32 s62, s22, 7")
    e("s_lshl_b32 s62, s62, 4")
    e("s_lshl_b32 s63, s24, 2")
    e("s_add_u32 s62, s62, s63")
    e("v_add_u32 v19, s62, v4")
    e("v_bfe_u32 v20, v19, 1, 3")
    e("v_lshrrev_b32 v21, 1, v3")
    e("v_xor_b32 v20, v20, v21")
    e("v_lshlrev_b32 v20, 4, v20")
    e("v_lshl_add_u32 v20, v19, 7, v20")
    e("v_and_b32 v21, 1, v3")
    e("v_lshl_add_u32 v20, v21, 3, v20")
    e(f"v_add_u32 v21, {3 * K1_XS}, v20")
    e("v_mov_b32 v22, 0")
    for c in range(7):
        vm.wait(ck[c])
        e("s_barrier")
        slot = c % 5
        e(f"ds_read_b64 v[24:25], v{20 if slot < 3 else 21} offset:{(slot if slot < 3 else slot - 3) * K1_XS}")
        if c == 0:
            issue_chunk(2)
        if c + 3 < 7:
            issue_chunk(c + 3)
        if c == 3:
            for ee in range(2):
                for r in range(4):
                    e(f"s_add_u32 s47, s46, {(64 * r + ee) * 450}")
                    e(f"buffer_load_ushort v{WJ + ee * 4 + r}, v16, s[48:51], s47 offen")
                    e(f"buffer_load_ushort v{WJ + 8 + ee * 4 + r}, v16, s[52:55], s47 offen")
            tw = vm.issue(16)
        if c == 6:
            vm.wait(tw)
            for r in range(8):
                e(f"v_lshl_or_b32 v{WJ + r}, v{WJ + 8 + r}, 16, v{WJ + r}")
            e(f"global_store_dwordx4 v17, {vr(WJ, 4)}, s[60:61]")
            e(f"global_store_dwordx4 v17, {vr(WJ + 4, 4)}, s[60:61] offset:16")
            vm.issue(2)
        vm.wait(tgw)
        e("s_waitcnt lgkmcnt(0)")
        e(f"v_dot2_f32_bf16 v22, v24, v{GW + 2 * c}, v22")
        e(f"v_dot2_f32_bf16 v22, v25, v{GW + 2 * c + 1}, v22")
    e("s_barrier")
    e("s_cmp_ge_u32 s22, 8")
    e("s_cbranch_scc1 k1_prod_end")
    e("s_nop 1")
    for sh in (1, 2, 4, 8):
        e(f"v_add_f32_dpp v22, v22, v22 row_ror:{sh} row_mask:0xf bank_mask:0xf")
        e("s_nop 1")
    e(f"s_mov_b32 s27, {f32_bits(-math.log2(math.e)):#x}")
    e("v_mul_f32 v22, s27, v22")
    e("v_exp_f32 v22, v22")
    e("s_lshl_b32 s26, s23, 9")
    e(f"s_add_u32 s26, s26, {GATE}")
    e("v_add_f32 v22, 1.0, v22")
    e("v_rcp_f32 v22, v22")
    add64s(32, 18, 26)
    e("v_lshlrev_b32 v19, 2, v19")
    e("global_store_dword v19, v22, s[32:33]")
    e("k1_prod_end:")
    prof_end(0)
    e("s_endpgm")

    e("k1_consumer:")
    if K1PF:
        e("s_and_b32 s44, s20, 1")
        e("s_lshl_b32 s44, s44, 7")
        e("s_lshl_b32 s45, s21, 2")
        e("s_add_u32 s44, s44, s45")
        e("s_add_u32 s44, s44, s24")
        e("s_mul_i32 s44, s44, 7168")
        e("v_lshlrev_b32 v8, 4, v2")
        e("v_add_u32 v8, s44, v8")
        e("v_add_u32 v9, 4096, v8")
        e("s_waitcnt lgkmcnt(0)")
        for i in range(7):
            e(f"global_load_dwordx4 {vr(192 + 4 * i, 4)}, v{8 if i < 4 else 9}, s[4:5] offset:{(i % 4) * 1024}")
        if K1PF > 1:
            e("s_lshl_b32 s44, s21, 2")
            e("s_add_u32 s44, s44, s24")
            e("s_mul_i32 s44, s44, 4*2688")
            e("s_lshr_b32 s45, s20, 1")
            e("s_mul_i32 s45, s45, 224")
            e("s_add_u32 s44, s44, s45")
            e("v_mul_u32_u24 v10, 147, v2")
            e("v_lshrrev_b32 v10, 11, v10")
            e("v_mul_u32_u24 v11, 14, v10")
            e("v_sub_u32 v11, v2, v11")
            e("v_mul_u32_u24 v10, 2688, v10")
            e("v_lshl_add_u32 v10, v11, 4, v10")
            e("s_mov_b32 s48, s12")
            e("s_mov_b32 s49, s13")
            e("s_mov_b32 s50, 1204224")
            e("s_mov_b32 s51, 0x00020000")
            for q in range(3):
                e(f"buffer_load_dwordx4 {vr(220 + 4 * q, 4)}, v10, s[48:51], s44 offen offset:{q * 896}")
    e("v_and_b32 v8, 1, v4")
    e("v_lshl_add_u32 v9, v4, 1, v8")
    e("v_xor_b32 v8, 1, v8")
    e("v_lshl_add_u32 v10, v4, 1, v8")
    e("v_mul_u32_u24 v9, 896, v9")
    e("v_mul_u32_u24 v10, 896, v10")
    e("v_lshrrev_b32 v8, 2, v3")
    e("v_mul_u32_u24 v8, 224, v8")
    e("v_and_b32 v11, 3, v3")
    e("v_lshl_add_u32 v8, v11, 3, v8")
    e(f"v_add_u32 v8, {K1_BOFF}, v8")
    e("v_add_u32 v20, v9, v8")
    e("v_add_u32 v21, v10, v8")
    e("v_lshrrev_b32 v8, 1, v3")
    e("v_xor_b32 v8, v8, v4")
    e("v_lshlrev_b32 v11, 7, v3")
    e("s_lshl_b32 s43, s24, 12")
    e("v_add_u32 v11, s43, v11")
    e("v_lshl_add_u32 v22, v8, 4, v11")
    e("v_xor_b32 v23, 64, v22")
    e("v_mov_b32 v9, v20")
    e("v_mov_b32 v10, v21")
    e("v_mov_b32 v12, v22")
    e("v_mov_b32 v13, v23")
    for r in range(56):
        e(f"v_mov_b32 v{ACC + r}, 0")
    for r in range(32):
        e(f"v_mov_b32 v{RB + r}, 0x3f803f80")
    e("s_mov_b32 s44, 0")
    e("s_mov_b32 s45, 7")
    e("s_mul_i32 s43, s24, 9216")
    e(f"s_add_u32 s43, s43, {2 * K1_XS}")

    def mainloop(transposed, lab):
        lg = Cnt("lgkmcnt", 15)
        tk = {}

        def rdA(kk, areg):
            for t in range(2):
                e(f"ds_read_b128 {vr(AF + (kk * 2 + t) * 4, 4)}, v{areg} offset:{t * 2048}")
                tk[("A", kk, t)] = lg.issue()

        def rdB(kk, jn, b0, b1):
            off = kk * 7168 + jn * 32
            b = BF + kk * 28 + jn * 4
            e(f"ds_read_b64_tr_b16 {vr(b, 2)}, v{b0} offset:{off}")
            e(f"ds_read_b64_tr_b16 {vr(b + 2, 2)}, v{b1} offset:{off}")
            tk[("B", kk, jn)] = lg.issue(2)

        def half(kk):
            for jn in range(7):
                lg.wait(max(tk[("A", kk, 0)], tk[("A", kk, 1)], tk[("B", kk, jn)]))
                for t in range(2):
                    acc = vr(ACC + (t * 7 + jn) * 4, 4)
                    xf = vr(AF + (kk * 2 + t) * 4, 4)
                    bf = vr(BF + kk * 28 + jn * 4, 4)
                    if transposed:
                        e(f"v_mfma_f32_16x16x32_bf16 {acc}, {bf}, {xf}, {acc}")
                    else:
                        e(f"v_mfma_f32_16x16x32_bf16 {acc}, {xf}, {bf}, {acc}")
                if kk == 0:
                    if jn == 0:
                        rdA(1, 13)
                    rdB(1, jn, 9, 10)
                else:
                    if jn == 0:
                        rdA(0, 12)
                    rdB(0, jn, 9, 10)

        e("s_barrier")
        stamp()
        rdA(0, 12)
        for jn in range(7):
            rdB(0, jn, 9, 10)
        e(f"{lab}:")
        lg.done = lg.n - 16
        half(0)
        e("s_add_u32 s44, s44, 1")
        e("s_cmp_eq_u32 s44, 5")
        e("s_cmov_b32 s44, 0")
        e(f"s_mul_i32 s46, s44, {K1_XS}")
        e(f"s_mul_i32 s47, s44, {K1_BS}")
        e("v_add_u32 v12, s46, v22")
        e("v_add_u32 v13, s46, v23")
        e("v_add_u32 v9, s47, v20")
        e("v_add_u32 v10, s47, v21")
        e("s_barrier")
        half(1)
        e("s_sub_u32 s45, s45, 1")
        e("s_cmp_lg_u32 s45, 0")
        e(f"s_cbranch_scc1 {lab}")
        e("s_waitcnt lgkmcnt(0)")
        e("s_nop 3")

    def out_base(region_sreg):
        e("s_and_b32 s62, s22, 3")
        e("s_lshl_b32 s62, s62, 19")
        e(f"s_add_u32 s{region_sreg}, s{region_sreg}, s62")
        e("s_lshl_b32 s62, s23, 2")
        e("s_add_u32 s62, s62, s24")
        e("s_lshl_b32 s62, s62, 11")
        e(f"s_add_u32 s{region_sreg}, s{region_sreg}, s62")
        add64s(62, 18, region_sreg)
        e("v_lshlrev_b32 v19, 4, v2")

    def out_store(fix):
        for hl in range(4):
            if hl:
                e("v_add_u32 v19, 0x20000, v19")
            for ks in range(2):
                n = hl * 2 + ks
                e(f"s_waitcnt lgkmcnt({7 - n})")
                if fix and ks == 1:
                    e("s_mov_b32 exec_lo, 0")
                    e(f"v_mov_b32 v{RB + n * 4 + 2}, 0")
                    e(f"v_mov_b32 v{RB + n * 4 + 3}, 0")
                    e("s_mov_b32 exec_lo, -1")
                e(f"global_store_dwordx4 v19, {vr(RB + n * 4, 4)}, s[62:63] offset:{ks * 1024}")

    e("s_waitcnt lgkmcnt(0)")
    e("s_cmp_ge_u32 s22, 8")
    e("s_cbranch_scc1 k1_normal")
    sv = _st[0]
    mainloop(True, "k1_loop_t")
    stamp()
    e("s_cmp_ge_u32 s22, 4")
    csel(64, KF, QF)
    e("s_cbranch_scc1 k1_noscale")
    e(f"s_mov_b32 s66, {f32_bits(QSCALE):#x}")
    e(f"s_mov_b32 s67, {f32_bits(QSCALE):#x}")
    for r in range(0, 56, 2):
        e(f"v_pk_mul_f32 {vr(ACC + r, 2)}, {vr(ACC + r, 2)}, s[66:67]")
    e("k1_noscale:")
    e("v_mul_u32_u24 v5, 240, v3")
    e("v_lshl_add_u32 v5, v4, 3, v5")
    e("v_add_u32 v5, s43, v5")
    for jn in range(7):
        for t in range(2):
            a = ACC + (t * 7 + jn) * 4
            e(f"v_cvt_pk_bf16_f32 v{a}, v{a}, v{a + 1}")
            e(f"v_cvt_pk_bf16_f32 v{a + 1}, v{a + 2}, v{a + 3}")
            e(f"ds_write_b64 v5, {vr(a, 2)} offset:{jn * 32 + t * 3840}")
    out_base(64)
    e("v_and_b32 v18, 31, v2")
    e("v_mul_u32_u24 v18, 240, v18")
    e("v_lshrrev_b32 v6, 5, v2")
    e("v_lshl_add_u32 v18, v6, 4, v18")
    e("v_add_u32 v18, s43, v18")
    e("s_waitcnt lgkmcnt(0)")
    stamp()
    for hl in range(4):
        for ks in range(2):
            o8 = 7 * hl + 4 * ks
            e(f"ds_read2_b64 {vr(RB + (hl * 2 + ks) * 4, 4)}, v18 offset0:{o8} offset1:{o8 + 1}")
    out_store(True)
    stamp()
    if INSTR: e("s_waitcnt vmcnt(0)")
    stamp()
    stamp_flush(69)
    prof_end(0)
    e("s_endpgm")
    _st[0] = sv
    e("k1_normal:")
    mainloop(False, "k1_loop_n")
    e("s_cmp_ge_u32 s22, 12")
    e("s_cbranch_scc1 k1_f")
    e(f"s_mov_b32 s64, {VF}")
    e("v_mul_u32_u24 v5, 80, v3")
    e("v_lshl_add_u32 v5, v4, 3, v5")
    e("v_add_u32 v5, s43, v5")
    for jn in range(7):
        for t in range(2):
            a = ACC + (t * 7 + jn) * 4
            e(f"v_cvt_pk_bf16_f32 v{a}, v{a}, v{a + 1}")
            e(f"v_cvt_pk_bf16_f32 v{a + 1}, v{a + 2}, v{a + 3}")
            e(f"ds_write_b64 v5, {vr(a, 2)} offset:{jn * 1280 + t * 32}")
    out_base(64)
    e("v_and_b32 v18, 31, v2")
    e("v_mul_u32_u24 v18, 80, v18")
    e("v_lshrrev_b32 v6, 5, v2")
    e("v_lshl_add_u32 v18, v6, 4, v18")
    e("v_add_u32 v18, s43, v18")
    e("s_waitcnt lgkmcnt(0)")
    e("s_mov_b32 exec_lo, 0x0fffffff")
    e("s_mov_b32 exec_hi, 0x0fffffff")
    for hl in range(4):
        for ks in range(2):
            e(f"ds_read_b128 {vr(RB + (hl * 2 + ks) * 4, 4)}, v18 offset:{hl * 28 * 80 + ks * 32}")
    e("s_mov_b64 exec, -1")
    out_store(False)
    prof_end(0)
    e("s_endpgm")
    e("k1_f:")
    e("v_lshlrev_b32 v5, 6, v3")
    e("v_lshl_add_u32 v5, v4, 3, v5")
    e("v_add_u32 v5, s43, v5")
    for jn in range(7):
        for t in range(2):
            a = ACC + (t * 7 + jn) * 4
            e(f"v_cvt_pk_bf16_f32 v{a}, v{a}, v{a + 1}")
            e(f"v_cvt_pk_bf16_f32 v{a + 1}, v{a + 2}, v{a + 3}")
            e(f"ds_write_b64 v5, {vr(a, 2)} offset:{jn * 1024 + t * 32}")
    e("s_sub_u32 s64, s22, 12")
    e(f"s_mul_i32 s64, s64, {112 * 4096}")
    e(f"s_add_u32 s64, s64, {YT}")
    e("s_lshl_b32 s62, s23, 8")
    e("s_add_u32 s64, s64, s62")
    e("s_lshl_b32 s62, s24, 6")
    e("s_add_u32 s64, s64, s62")
    add64s(62, 18, 64)
    e("v_lshlrev_b32 v18, 4, v2")
    e("v_add_u32 v18, s43, v18")
    e("v_lshrrev_b32 v19, 2, v2")
    e("v_lshlrev_b32 v19, 12, v19")
    e("v_and_b32 v6, 3, v2")
    e("v_lshl_add_u32 v19, v6, 4, v19")
    e("s_waitcnt lgkmcnt(0)")
    for n in range(7):
        e(f"ds_read_b128 {vr(RB + n * 4, 4)}, v18 offset:{n * 1024}")
    for n in range(7):
        if n:
            e("v_add_u32 v19, 0x10000, v19")
        e(f"s_waitcnt lgkmcnt({6 - n})")
        e(f"global_store_dwordx4 v19, {vr(RB + n * 4, 4)}, s[62:63]")
    prof_end(0)
    e("k1_end:")
    e("s_endpgm")
    return descriptor(name, 232)


def tables():
    T = []
    T.append('.section .rodata,"a"')
    for i in range(448):
        T.append(f".set TC_{i}, {bf16_bits(math.cos(2 * math.pi * i / 448)):#x}")
    sc = 2.0 / (2048 * 448)
    for i in range(448):
        T.append(f".set TG_{i}, {bf16_bits(sc * math.cos(2 * math.pi * i / 448)):#x}")
    T.append(""".altmacro
.macro emitc a
 .short TC_\\a
.endm
.macro emitg a
 .short TG_\\a
.endm
.macro emitgh a
 .short TG_\\a - 0x80
.endm
.p2align 8
tab_F:
.set dd, 0
.rept 448
 .set aa, 0
 .rept 225
  emitc %aa
  .set aa, (aa + dd) % 448
 .endr
 .set aa, (dd + 112) % 448
 .rept 223
  emitc %aa
  .set aa, (aa + dd) % 448
 .endr
 .set dd, dd+1
.endr
.p2align 8
tab_G:
.set ct, 0
.rept 28
 .set ks, 0
 .rept 14
  .set ln, 0
  .rept 64
   .set dc, 16*ct + (ln & 15)
   .set cc, 32*ks + 8*(ln >> 4)
   .rept 8
    .if cc == 0
     emitgh 0
    .elseif cc == 224
     emitgh %((224*dc) % 448)
    .elseif cc < 224
     emitg %((cc*dc) % 448)
    .else
     emitg %(((cc-224)*dc + 112) % 448)
    .endif
    .set cc, cc+1
   .endr
   .set ln, ln+1
  .endr
  .set ks, ks+1
 .endr
 .set ct, ct+1
.endr
.noaltmacro""")
    def emit_u16(vals):
        for i in range(0, len(vals), 16):
            w = [vals[j] | (vals[j + 1] << 16) for j in range(i, min(i + 16, len(vals)), 2)]
            T.append(".long " + ",".join(f"{x:#x}" for x in w))

    def emit_u32(vals):
        for i in range(0, len(vals), 8):
            T.append(".long " + ",".join(f"{x:#x}" for x in vals[i:i + 8]))

    T.append(".p2align 8\ntab_B64:")
    v = []
    for wv in range(4):
        for ty in range(3):
            for ks in range(2):
                for l in range(64):
                    n = 16 * wv + (l & 15)
                    for j in range(8):
                        k = 32 * ks + 8 * (l >> 4) + j
                        ang = 2 * math.pi * ((n * k) % 64) / 64
                        val = math.cos(ang) if ty == 0 else (math.sin(ang) if ty == 1 else -math.sin(ang))
                        if abs(val) < 1e-9: val = 0.0
                        v.append(bf16_bits(val))
    emit_u16(v)
    T.append(".p2align 8\ntab_A32:")
    v = []
    for ty in range(2):
        for mt in range(2):
            for l in range(64):
                m = 16 * mt + (l & 15)
                g = l >> 4
                for j in range(8):
                    n2 = 4 * g + j if j < 4 else 16 + 4 * g + j - 4
                    ang = 2 * math.pi * ((m * n2) % 32) / 32
                    val = math.cos(ang) if ty == 0 else math.sin(ang)
                    if abs(val) < 1e-9: val = 0.0
                    v.append(bf16_bits(val))
    emit_u16(v)
    T.append(".p2align 8\ntab_TW:")
    v = []
    for wv in range(4):
        for mt in range(2):
            for cs in range(2):
                for l in range(64):
                    f1 = 16 * wv + (l & 15)
                    g = l >> 4
                    for r in range(4):
                        n2 = 16 * mt + 4 * g + r
                        ang = 2 * math.pi * ((n2 * f1) % 2048) / 2048
                        v.append(f32_bits(math.cos(ang) if cs == 0 else math.sin(ang)))
    emit_u32(v)
    return "\n".join(T)


def main():
    which = sys.argv[1] if len(sys.argv) > 1 else "123"
    launches = []
    descs = []
    if "1" in which:
        launches.append("; @launch kernel=k1_kernel grid=(256,1,1) block=(512,1,1) lds=153600")
    if "2" in which:
        launches.append("; @launch kernel=k2_kernel grid=(256,1,1) block=(512,1,1) lds=57600")
    if "3" in which:
        launches.append("; @launch kernel=k3_kernel grid=(224,1,1) block=(512,1,1) lds=139264")
    print("\n".join(launches))
    print('.amdgcn_target "amdgcn-amd-amdhsa--gfx950"\n.text')
    if "1" in which:
        descs.append(k1())
    if "2" in which:
        from gen_k2 import k2
        descs.append(k2())
    if "3" in which:
        from gen_k3 import k3
        descs.append(k3())
    print("\n".join(L))
    print(tables())
    print("\n".join(descs))


if __name__ == "__main__":
    import gen
    gen.main()
```

```python
from gen import *
import gen
import os
UPOL = os.environ.get('UPOL', '')
PREFETCH = int(os.environ.get('PREFETCH', '1'))

K2_COMB = 0
K2_EX = 49152
K2_CNT = 57344
K2_LDS = 57600


def k2():
    name = "k2_kernel"
    header(name)
    gen._st[0] = 0
    e("s_cmp_ge_u32 s2, 256")
    e("s_cbranch_scc1 k2_end")
    stamp()
    prof_start()
    e("s_load_dwordx2 s[18:19], s[0:1], 72")
    e("v_lshrrev_b32 v1, 6, v0")
    e("v_and_b32 v2, 63, v0")
    e("v_readfirstlane_b32 s24, v1")
    e("v_lshlrev_b32 v3, 4, v2")
    e(f"v_mov_b32 v6, {K2_CNT}")
    e("v_mov_b32 v7, 0")
    e("ds_write_b32 v6, v7")
    e("s_waitcnt lgkmcnt(0)")
    e("s_barrier")
    e("s_cmp_ge_u32 s24, 4")
    e("s_cbranch_scc1 k2_fft")
    Q, O, S, P, KV = 16, 48, 112, 144, 152
    e("s_and_b32 s20, s2, 7")
    e("s_lshr_b32 s21, s2, 3")
    e("s_lshl_b32 s22, s20, 1")
    e("s_and_b32 s23, s21, 1")
    e("s_add_u32 s22, s22, s23")
    e("s_lshr_b32 s23, s21, 1")
    e("v_and_b32 v4, 0x33f, v3")
    e("v_bfe_u32 v5, v3, 6, 1")
    e("v_lshl_or_b32 v4, v5, 7, v4")
    e("v_bfe_u32 v5, v3, 7, 1")
    e("v_lshl_or_b32 v4, v5, 6, v4")
    e("s_lshl_b32 s25, s22, 17")
    e("s_lshl_b32 s26, s24, 15")
    e("s_add_u32 s26, s26, s25")
    e(f"s_add_u32 s27, s26, {KF}")
    e(f"s_add_u32 s26, s26, {VF}")
    e("s_waitcnt lgkmcnt(0)")
    add64s(28, 18, 27)
    add64s(30, 18, 26)
    vm = Cnt("vmcnt", 63)

    def ldkv(buf, off):
        b = KV + 16 * buf
        e(f"global_load_dwordx4 {vr(b, 4)}, v4, s[28:29] offset:{off}")
        e(f"global_load_dwordx4 {vr(b + 4, 4)}, v4, s[28:29] offset:{off + 1024}")
        e(f"global_load_dwordx4 {vr(b + 8, 4)}, v3, s[30:31] offset:{off}")
        e(f"global_load_dwordx4 {vr(b + 12, 4)}, v3, s[30:31] offset:{off + 1024}")

    def adv(n):
        e(f"s_add_u32 s28, s28, {n}")
        e("s_addc_u32 s29, s29, 0")
        e(f"s_add_u32 s30, s30, {n}")
        e("s_addc_u32 s31, s31, 0")

    e("s_lshl_b32 s32, s23, 13")
    e("s_add_u32 s32, s32, s25")
    if QF: e(f"s_add_u32 s32, s32, {QF}")
    for jj in range(4):
        e(f"s_add_u32 s33, s24, {1 + jj}")
        e("s_and_b32 s33, s33, 3")
        e("s_lshl_b32 s33, s33, 11")
        e("s_add_u32 s33, s33, s32")
        add64s(34, 18, 33)
        if jj == 0:
            e(f"global_load_dwordx4 {vr(Q, 4)}, v3, s[34:35]")
            e(f"global_load_dwordx4 {vr(Q + 4, 4)}, v3, s[34:35] offset:1024")
            ldkv(0, 0)
        else:
            e(f"global_load_dwordx4 {vr(Q + 8 * jj, 4)}, v3, s[34:35]")
            e(f"global_load_dwordx4 {vr(Q + 8 * jj + 4, 4)}, v3, s[34:35] offset:1024")
    ldkv(1, 2048)
    adv(4096)
    ldkv(2, 0)
    adv(2048)
    for r in range(64):
        e(f"v_mov_b32 v{O + r}, 0")
    for r in range(8):
        e(f"v_mov_b32 v{P + r}, 0")
    for r in range(8):
        e(f"v_mov_b32 v{KV + 48 + 8 + r}, 0")
    e("s_waitcnt vmcnt(14)")
    e(f"v_mfma_f32_32x32x16_bf16 {vr(S, 16)}, {vr(KV, 4)}, {vr(Q, 4)}, 0")
    e(f"v_mfma_f32_32x32x16_bf16 {vr(S, 16)}, {vr(KV + 4, 4)}, {vr(Q + 4, 4)}, {vr(S, 16)}")
    e("s_waitcnt vmcnt(8)")
    e("s_mov_b32 s36, 3")
    for jj in range(3):
        e(f"s_add_u32 s33, s24, {1 + jj}")
        e("s_and_b32 s33, s33, 3")
        e("s_mul_i32 s33, s33, 12288")
        e(f"v_add_u32 v{5 + jj}, s33, v3")
    e("s_nop 3")
    stamp()

    def exps(base, lo, hi):
        for r in range(lo, hi):
            e(f"v_exp_f32 v{base + r}, v{base + r}")

    def iteration(last):
        for n in range(16):
            j, tb = n & 3, n >> 2
            Sc, Sn = S + 16 * (n & 1), S + 16 * ((n + 1) & 1)
            jn, tbn = (j + 1) & 3, ((n + 1) >> 2) & 3
            jp, tbp = (j - 1) & 3, ((n - 1) >> 2) & 3
            doqk = not (last and n == 15)
            if j == 3 and doqk:
                e(f"s_waitcnt vmcnt({8 if not last else [8, 4, 0][tb]})")
            if doqk:
                e(f"v_mfma_f32_32x32x16_bf16 {vr(Sn, 16)}, {vr(KV + 16 * tbn, 4)}, {vr(Q + 8 * jn, 4)}, 0")
            exps(Sc, 0, 4)
            e(f"v_mfma_f32_32x32x16_bf16 {vr(O + 16 * jp, 16)}, {vr(KV + 16 * tbp + 12, 4)}, {vr(P + 4, 4)}, {vr(O + 16 * jp, 16)}")
            if j == 0 and (not last or n == 0):
                ldkv(tbp, 0)
                adv(2048)
            exps(Sc, 4, 8)
            for i in range(4):
                e(f"v_cvt_pk_bf16_f32 v{P + i}, v{Sc + 2 * i}, v{Sc + 2 * i + 1}")
            if doqk:
                e(f"v_mfma_f32_32x32x16_bf16 {vr(Sn, 16)}, {vr(KV + 16 * tbn + 4, 4)}, {vr(Q + 8 * jn + 4, 4)}, {vr(Sn, 16)}")
            exps(Sc, 8, 12)
            e(f"v_mfma_f32_32x32x16_bf16 {vr(O + 16 * j, 16)}, {vr(KV + 16 * tb + 8, 4)}, {vr(P, 4)}, {vr(O + 16 * j, 16)}")
            if last and n >= 13:
                jj = n - 13
                for a in range(4):
                    e(f"ds_write_b128 v{5 + jj}, {vr(O + 16 * jj + 4 * a, 4)} offset:{K2_COMB + (2 - jj) * 4096 + a * 1024}")
            exps(Sc, 12, 16)
            for i in range(4):
                e(f"v_cvt_pk_bf16_f32 v{P + 4 + i}, v{Sc + 8 + 2 * i}, v{Sc + 8 + 2 * i + 1}")

    e("k2_loop:")
    iteration(False)
    e("s_sub_u32 s36, s36, 1")
    e("s_cmp_lg_u32 s36, 0")
    e("s_cbranch_scc1 k2_loop")
    iteration(True)
    stamp()
    e("s_nop 1")
    e(f"v_mfma_f32_32x32x16_bf16 {vr(O + 48, 16)}, {vr(KV + 48 + 12, 4)}, {vr(P + 4, 4)}, {vr(O + 48, 16)}")
    e("s_mul_i32 s33, s24, 12288")
    e("v_add_u32 v5, s33, v3")
    e("s_waitcnt lgkmcnt(0)")
    e("s_barrier")
    for p in range(3):
        for a in range(4):
            e(f"ds_read_b128 {vr(O + 16 * p + 4 * a, 4)}, v5 offset:{K2_COMB + p * 4096 + a * 1024}")
    OF = O + 48
    for p in range(3):
        for a in range(4):
            e(f"s_waitcnt lgkmcnt({11 - (p * 4 + a)})")
            for r in range(4):
                e(f"v_add_f32 v{OF + 4 * a + r}, v{OF + 4 * a + r}, v{O + 16 * p + 4 * a + r}")
    stamp()

    def finalize(check):
        e(f"v_mov_b32 v6, v{OF + 12}")
        e(f"v_mov_b32 v7, v{OF + 12}")
        e("s_nop 1")
        e("v_permlane32_swap_b32 v6, v7")
        if check:
            e(f"v_max3_f32 v8, |v{OF}|, |v{OF + 1}|, |v{OF + 2}|")
            for r in range(3, 12, 2):
                e(f"v_max3_f32 v8, v8, |v{OF + r}|, |v{OF + r + 1}|")
            e(f"v_max3_f32 v8, v8, |v{OF + 13}|, |v{OF + 14}|")
            e(f"v_max_f32 v8, v8, |v{OF + 15}|")
            e("s_mov_b32 s40, 0x7b800000")
            e("s_mov_b32 s41, 0x30800000")
            e("s_mov_b32 s42, 0x53800000")
            e("v_cmp_gt_f32 s[44:45], s40, v8")
            e("v_cmp_le_f32 s[46:47], s41, v7")
            e("v_cmp_ge_f32 s[48:49], s42, v7")
            e(f"v_add_f32 v9, v{OF}, v{OF + 1}")
            for r in range(2, 16):
                e(f"v_add_f32 v9, v9, v{OF + r}")
            e("v_cmp_o_f32 s[50:51], v9, v9")
            e("s_and_b64 s[44:45], s[44:45], s[46:47]")
            e("s_and_b64 s[48:49], s[48:49], s[50:51]")
            e("s_and_b64 s[44:45], s[44:45], s[48:49]")
            e("s_cmp_eq_u64 s[44:45], -1")
            e("s_cbranch_scc0 k2_slow")
        e("v_rcp_f32 v7, v7")
        e("s_lshl_b32 s33, s23, 3")
        e("s_lshl_b32 s34, s24, 1")
        e("s_add_u32 s33, s33, s34")
        e("s_mul_i32 s33, s33, 14336")
        e(f"s_add_u32 s33, s33, {OB}")
        add64s(34, 18, 33)
        e("v_bfe_u32 v8, v2, 4, 1")
        e("v_mul_u32_u24 v8, 14336, v8")
        e("v_and_b32 v9, 15, v2")
        e("v_lshl_add_u32 v8, v9, 4, v8")
        e("s_mul_i32 s33, s22, 7")
        e("v_lshrrev_b32 v9, 5, v2")
        e("v_add_u32 v9, s33, v9")
        e("v_lshrrev_b32 v10, 1, v9")
        e("v_lshl_add_u32 v8, v10, 8, v8")
        e("v_and_b32 v9, 1, v9")
        e("v_lshl_add_u32 v8, v9, 3, v8")
        for r in range(16):
            e(f"v_mul_f32 v{OF + r}, v{OF + r}, v7")
        for a in range(4):
            e(f"v_cvt_pk_bf16_f32 v{OF + 4 * a}, v{OF + 4 * a}, v{OF + 4 * a + 1}")
            e(f"v_cvt_pk_bf16_f32 v{OF + 4 * a + 1}, v{OF + 4 * a + 2}, v{OF + 4 * a + 3}")
            if a == 3:
                e("s_mov_b32 exec_hi, 0")
            e(f"global_store_dwordx2 v8, {vr(OF + 4 * a, 2)}, s[34:35] offset:{a * 256}")

    finalize(True)
    stamp()
    if INSTR:
        e("s_mov_b32 exec_hi, -1")
        e("s_waitcnt vmcnt(0)")
    stamp()
    stamp_flush(24)
    prof_end(1)
    e("s_endpgm")
    e("k2_slow:")
    e("s_waitcnt vmcnt(0)")
    e(f"s_add_u32 s27, s25, {KF}")
    e(f"s_add_u32 s26, s25, {VF}")
    add64s(28, 18, 27)
    add64s(30, 18, 26)
    e("v_mov_b32 v10, 0xff800000")
    e("s_mov_b32 s36, 64")
    QS = Q + 24
    e("k2_slow1:")
    e(f"global_load_dwordx4 {vr(KV, 4)}, v4, s[28:29]")
    e(f"global_load_dwordx4 {vr(KV + 4, 4)}, v4, s[28:29] offset:1024")
    e("s_add_u32 s28, s28, 2048")
    e("s_addc_u32 s29, s29, 0")
    e("s_waitcnt vmcnt(0)")
    e(f"v_mfma_f32_32x32x16_bf16 {vr(S, 16)}, {vr(KV, 4)}, {vr(QS, 4)}, 0")
    e(f"v_mfma_f32_32x32x16_bf16 {vr(S, 16)}, {vr(KV + 4, 4)}, {vr(QS + 4, 4)}, {vr(S, 16)}")
    e("s_nop 15")
    e("s_nop 3")
    for r in range(0, 16, 2):
        e(f"v_max3_f32 v10, v10, v{S + r}, v{S + r + 1}")
    e("s_sub_u32 s36, s36, 1")
    e("s_cmp_lg_u32 s36, 0")
    e("s_cbranch_scc1 k2_slow1")
    e("v_mov_b32 v11, v10")
    e("v_mov_b32 v12, v10")
    e("s_nop 1")
    e("v_permlane32_swap_b32 v11, v12")
    e("s_nop 1")
    e("v_max_f32 v10, v11, v12")
    add64s(28, 18, 27)
    for r in range(16):
        e(f"v_mov_b32 v{OF + r}, 0")
    e("s_mov_b32 s36, 64")
    e("k2_slow2:")
    ldkv(0, 0)
    adv(2048)
    e("s_waitcnt vmcnt(0)")
    e(f"v_mfma_f32_32x32x16_bf16 {vr(S, 16)}, {vr(KV, 4)}, {vr(QS, 4)}, 0")
    e(f"v_mfma_f32_32x32x16_bf16 {vr(S, 16)}, {vr(KV + 4, 4)}, {vr(QS + 4, 4)}, {vr(S, 16)}")
    e("s_nop 15")
    e("s_nop 3")
    for r in range(16):
        e(f"v_sub_f32 v{S + r}, v{S + r}, v10")
    exps(S, 0, 16)
    e("s_nop 0")
    for i in range(8):
        e(f"v_cvt_pk_bf16_f32 v{P + i}, v{S + 2 * i}, v{S + 2 * i + 1}")
    e("s_nop 1")
    e(f"v_mfma_f32_32x32x16_bf16 {vr(OF, 16)}, {vr(KV + 8, 4)}, {vr(P, 4)}, {vr(OF, 16)}")
    e(f"v_mfma_f32_32x32x16_bf16 {vr(OF, 16)}, {vr(KV + 12, 4)}, {vr(P + 4, 4)}, {vr(OF, 16)}")
    e("s_sub_u32 s36, s36, 1")
    e("s_cmp_lg_u32 s36, 0")
    e("s_cbranch_scc1 k2_slow2")
    e("s_nop 15")
    e("s_nop 3")
    finalize(False)
    prof_end(1)
    e("s_endpgm")

    e("k2_fft:")
    e("s_sub_u32 s24, s24, 4")
    e("v_and_b32 v4, 15, v2")
    e("v_lshrrev_b32 v5, 4, v2")
    e("s_and_b32 s25, s2, 7")
    e("s_mul_i32 s25, s25, 29")
    e("s_lshr_b32 s26, s2, 3")
    e("s_add_u32 s25, s25, s26")
    e("s_cmp_ge_u32 s26, 29")
    e("s_cbranch_scc1 k2_prefetch")
    e("s_cmp_ge_u32 s25, 225")
    e("s_cbranch_scc1 k2_prefetch")
    e("s_setprio 3")
    YR, YI, BC, BS, BN, AC, AS, TC, TS, WW, RE, IM, TMP, FR, FI, FN = 16, 32, 48, 56, 64, 72, 80, 88, 96, 104, 112, 120, 128, 160, 164, 168
    WR, WI = 172, 180
    pc_addr(26, "tab_B64")
    pc_addr(28, "tab_A32")
    pc_addr(30, "tab_TW")
    e("s_mul_i32 s32, s24, 6144")
    add64s(26, 26, 32)
    e("s_lshl_b32 s32, s24, 12")
    add64s(30, 30, 32)
    e("s_lshl_b32 s32, s25, 12")
    e(f"s_add_u32 s33, s32, {YT}")
    e(f"s_add_u32 s38, s32, {UT}")
    e("s_waitcnt lgkmcnt(0)")
    add64s(34, 18, 33)
    add64(36, 34, 224 * 4096)
    add64s(40, 18, 38)
    add64(42, 40, 224 * 4096)
    for mt in range(2):
        for ks in range(2):
            e(f"global_load_dwordx4 {vr(YR + (mt * 2 + ks) * 4, 4)}, v3, s[34:35] offset:{mt * 2048 + ks * 1024}")
    e("s_mov_b32 s44, 1")
    e("s_cmp_eq_u32 s25, 0")
    e("s_cmov_b32 s44, 0")
    e("s_cmp_eq_u32 s25, 224")
    e("s_cmov_b32 s44, 0")
    for r in range(16):
        e(f"v_mov_b32 v{YI + r}, 0")
    e("s_cmp_eq_u32 s44, 0")
    e("s_cbranch_scc1 k2_fft_noim")
    for mt in range(2):
        for ks in range(2):
            e(f"global_load_dwordx4 {vr(YI + (mt * 2 + ks) * 4, 4)}, v3, s[36:37] offset:{mt * 2048 + ks * 1024}")
    e("k2_fft_noim:")
    e("v_add_u32 v6, 4096, v3")
    for ty in range(3):
        for ks in range(2):
            off = (ty * 2 + ks) * 1024
            if off < 4096:
                e(f"global_load_dwordx4 {vr(BC + ty * 8 + ks * 4, 4)}, v3, s[26:27] offset:{off}")
            else:
                e(f"global_load_dwordx4 {vr(BC + ty * 8 + ks * 4, 4)}, v6, s[26:27] offset:{off - 4096}")
    for mt in range(2):
        for cs in range(2):
            e(f"global_load_dwordx4 {vr(TC + cs * 8 + mt * 4, 4)}, v3, s[30:31] offset:{(mt * 2 + cs) * 1024}")
    for ty in range(2):
        for mt in range(2):
            e(f"global_load_dwordx4 {vr(AC + ty * 8 + mt * 4, 4)}, v3, s[28:29] offset:{(ty * 2 + mt) * 1024}")
    e("s_lshl_b32 s32, s25, 13")
    e("s_lshl_b32 s33, s24, 8")
    e("s_add_u32 s32, s32, s33")
    e(f"s_add_u32 s32, s32, {WT}")
    add64s(46, 18, 32)
    e("v_lshlrev_b32 v7, 10, v5")
    e("v_lshl_add_u32 v7, v4, 4, v7")
    e("v_add_u32 v8, 4096, v7")
    e(f"global_load_dwordx4 {vr(WW, 4)}, v7, s[46:47]")
    e(f"global_load_dwordx4 {vr(WW + 4, 4)}, v8, s[46:47]")
    e("s_lshl_b32 s32, s24, 10")
    e(f"s_add_u32 s32, s32, {K2_EX}")
    e("v_lshlrev_b32 v9, 6, v4")
    e("v_lshl_add_u32 v9, v5, 3, v9")
    e("v_add_u32 v9, s32, v9")
    e("v_lshrrev_b32 v10, 3, v4")
    e("v_lshl_add_u32 v9, v10, 5, v9")
    e("v_xor_b32 v10, 32, v9")
    e("v_lshrrev_b32 v11, 2, v4")
    e("v_lshl_add_u32 v11, v5, 3, v11")
    e("v_lshlrev_b32 v11, 6, v11")
    e("v_and_b32 v12, 3, v4")
    e("v_lshl_add_u32 v11, v12, 3, v11")
    e("v_and_b32 v12, 1, v5")
    e("v_lshl_add_u32 v11, v12, 5, v11")
    e(f"v_add_u32 v11, {K2_EX}, v11")
    e("v_xor_b32 v12, 32, v11")
    e("s_lshl_b32 s32, s24, 10")
    e("v_lshlrev_b32 v13, 6, v4")
    e("v_lshl_add_u32 v13, v5, 3, v13")
    e("v_add_u32 v13, s32, v13")
    e("s_waitcnt vmcnt(10)")

    def mf(d, a, b, first):
        e(f"v_mfma_f32_16x16x32_bf16 {vr(d, 4)}, {vr(a, 4)}, {vr(b, 4)}, {'0' if first else vr(d, 4)}")

    for step in range(4):
        for mt in range(2):
            ks = step & 1
            if step < 2:
                mf(RE + 4 * mt, YR + (mt * 2 + ks) * 4, BC + 4 * ks, step == 0)
                mf(IM + 4 * mt, YI + (mt * 2 + ks) * 4, BC + 4 * ks, step == 0)
            else:
                mf(RE + 4 * mt, YI + (mt * 2 + ks) * 4, BS + 4 * ks, False)
                mf(IM + 4 * mt, YR + (mt * 2 + ks) * 4, BN + 4 * ks, False)
    e("s_waitcnt vmcnt(6)")
    e("s_nop 7")

    def cmul(sgn):
        for k in range(8):
            e(f"v_mul_f32 v{TMP + k}, v{RE + k}, v{TC + k}")
            e(f"v_mul_f32 v{TMP + 8 + k}, v{IM + k}, v{TC + k}")
        for k in range(8):
            if sgn < 0:
                e(f"v_fma_f32 v{TMP + k}, v{IM + k}, v{TS + k}, v{TMP + k}")
                e(f"v_fma_f32 v{TMP + 8 + k}, -v{RE + k}, v{TS + k}, v{TMP + 8 + k}")
            else:
                e(f"v_fma_f32 v{TMP + k}, -v{IM + k}, v{TS + k}, v{TMP + k}")
                e(f"v_fma_f32 v{TMP + 8 + k}, v{RE + k}, v{TS + k}, v{TMP + 8 + k}")

    def pack3(neg_of_re):
        for i in range(4):
            e(f"v_cvt_pk_bf16_f32 v{FR + i}, v{TMP + 2 * i}, v{TMP + 2 * i + 1}")
            e(f"v_cvt_pk_bf16_f32 v{FI + i}, v{TMP + 8 + 2 * i}, v{TMP + 8 + 2 * i + 1}")
            b = TMP if neg_of_re else TMP + 8
            e(f"v_cvt_pk_bf16_f32 v{FN + i}, -v{b + 2 * i}, -v{b + 2 * i + 1}")

    cmul(-1)
    pack3(True)
    e("s_waitcnt vmcnt(2)")
    e("s_nop 1")
    for mt in range(2):
        mf(RE + 4 * mt, AC + 4 * mt, FR, True)
        mf(IM + 4 * mt, AC + 4 * mt, FI, True)
    for mt in range(2):
        mf(RE + 4 * mt, AS + 4 * mt, FI, False)
        mf(IM + 4 * mt, AS + 4 * mt, FN, False)
    e("s_waitcnt vmcnt(0)")
    for k in range(8):
        e(f"v_lshlrev_b32 v{TMP + 16 + k}, 16, v{WW + k}")
        e(f"v_and_b32 v{TMP + 24 + k}, 0xffff0000, v{WW + k}")
    for k in range(8):
        e(f"v_mul_f32 v{TMP + k}, v{RE + k}, v{TMP + 16 + k}")
        e(f"v_mul_f32 v{TMP + 8 + k}, v{IM + k}, v{TMP + 16 + k}")
    for k in range(8):
        e(f"v_fma_f32 v{TMP + k}, -v{IM + k}, v{TMP + 24 + k}, v{TMP + k}")
        e(f"v_fma_f32 v{TMP + 8 + k}, v{RE + k}, v{TMP + 24 + k}, v{TMP + 8 + k}")
    pack3(False)
    e("s_nop 1")
    for mt in range(2):
        mf(RE + 4 * mt, AC + 4 * mt, FR, True)
        mf(IM + 4 * mt, AC + 4 * mt, FI, True)
    for mt in range(2):
        mf(RE + 4 * mt, AS + 4 * mt, FN, False)
        mf(IM + 4 * mt, AS + 4 * mt, FR, False)
    e("s_nop 7")
    e("s_nop 0")
    cmul(+1)
    for part in range(2):
        for mt in range(2):
            b = TMP + 8 * part + 4 * mt
            e(f"v_cvt_pk_bf16_f32 v{b}, v{b}, v{b + 1}")
            e(f"v_cvt_pk_bf16_f32 v{b + 1}, v{b + 2}, v{b + 3}")
            e(f"ds_write_b64 v{9 + mt}, {vr(b, 2)} offset:{part * 4096}")
    e(f"v_mov_b32 v6, {K2_CNT}")
    e("v_mov_b32 v7, 1")
    e("s_waitcnt lgkmcnt(0)")
    e("s_mov_b64 exec, 1")
    e("ds_add_u32 v6, v7")
    e("s_mov_b64 exec, -1")
    e("k2_fft_spin:")
    e("ds_read_b32 v7, v6")
    e("s_waitcnt lgkmcnt(0)")
    e("v_readfirstlane_b32 s32, v7")
    e("s_cmp_ge_u32 s32, 4")
    e("s_cbranch_scc1 k2_fft_go")
    e("s_sleep 1")
    e("s_branch k2_fft_spin")
    e("k2_fft_go:")
    for part in range(2):
        for mt in range(2):
            for ks in range(2):
                b = YR + ((part * 2 + mt) * 2 + ks) * 4
                for t2 in range(2):
                    e(f"ds_read_b64_tr_b16 {vr(b + 2 * t2, 2)}, v{11 + mt} offset:{part * 4096 + ks * 2048 + t2 * 256}")
    e("s_waitcnt lgkmcnt(0)")

    def af(part, mt, ks): return YR + ((part * 2 + mt) * 2 + ks) * 4
    for step in range(4):
        ks = step & 1
        for mt in range(2):
            if step < 2:
                mf(RE + 4 * mt, af(0, mt, ks), BC + 4 * ks, step == 0)
                mf(IM + 4 * mt, af(1, mt, ks), BC + 4 * ks, step == 0)
            else:
                mf(RE + 4 * mt, af(1, mt, ks), BN + 4 * ks, False)
                mf(IM + 4 * mt, af(0, mt, ks), BS + 4 * ks, False)
    e("s_nop 7")
    e("s_nop 0")
    for mt in range(2):
        b = RE + 4 * mt
        e(f"v_cvt_pk_bf16_f32 v{b}, v{b}, v{b + 1}")
        e(f"v_cvt_pk_bf16_f32 v{b + 1}, v{b + 2}, v{b + 3}")
        e(f"global_store_dwordx2 v13, {vr(b, 2)}, s[40:41] offset:{mt * 32}{UPOL}")
    e("s_cmp_eq_u32 s44, 0")
    e("s_cbranch_scc1 k2_prefetch")
    for mt in range(2):
        b = IM + 4 * mt
        e(f"v_cvt_pk_bf16_f32 v{b}, v{b}, v{b + 1}")
        e(f"v_cvt_pk_bf16_f32 v{b + 1}, v{b + 2}, v{b + 3}")
        e(f"global_store_dwordx2 v13, {vr(b, 2)}, s[42:43] offset:{mt * 32}{UPOL}")
    e("s_branch k2_prefetch")

    e("k2_prefetch:")
    e("s_setprio 0")
    e("s_waitcnt lgkmcnt(0)")
    if PREFETCH:
        pc_addr(52, "tab_G")
        e(f"s_mov_b32 s54, 401408")
        e("s_mov_b32 s55, 0x00020000")
        e("s_lshr_b32 s26, s2, 3")
        e("s_lshl_b32 s26, s26, 2")
        e("s_add_u32 s26, s26, s24")
        e("s_lshl_b32 s27, s26, 12")
        for i in range(4):
            e(f"buffer_load_dwordx4 {vr(176 + 4 * i, 4)}, v3, s[52:55], s27 offen offset:{i * 1024}")
        add64(52, 18, WOT)
        for i in range(4):
            e(f"buffer_load_dwordx4 {vr(196 + 4 * i, 4)}, v3, s[52:55], s27 offen offset:{i * 1024}")
        pc_addr(56, "k3_kernel")
        e("s_mov_b32 s58, k3_code_end-k3_kernel")
        e("s_mov_b32 s59, 0x00020000")
        e("s_lshl_b32 s27, s26, 10")
        e(f"buffer_load_dwordx4 {vr(192, 4)}, v3, s[56:59], s27 offen")
    prof_end(1)
    e("s_endpgm")
    e("k2_end:")
    e("s_endpgm")
    return descriptor(name, 216)
```

```python
import math, struct, sys
import numpy as np

QF = 0x000000
KF = 0x200000
VF = 0x400000
YT = 0x600000
WT = 0x800000
WOT = 0xA00000
GATE = 0xA80000
OB = 0xB00000
UT = 0xD00000

L = []


def e(s=""):
    L.append("  " + s if s and not s.endswith(":") else s)


def bf16_bits(x):
    u = struct.unpack("<I", struct.pack("<f", float(x)))[0]
    u = (u + 0x7FFF + ((u >> 16) & 1)) >> 16
    return u & 0xFFFF


def f32_bits(x):
    return struct.unpack("<I", struct.pack("<f", float(x)))[0]


def vr(a, n):
    return f"v[{a}:{a + n - 1}]" if n > 1 else f"v{a}"


def header(name):
    e(f".globl {name}")
    e(".p2align 8")
    e(f".type {name},@function")
    e(f"{name}:")


def descriptor(name, vgpr, sgpr=96, accum=None):
    if INSTR:
        pass
    if accum is None:
        accum = (vgpr + 3) // 4 * 4
    return f""".p2align 6
.amdhsa_kernel {name}
  .amdhsa_next_free_vgpr {vgpr}
  .amdhsa_next_free_sgpr {sgpr}
  .amdhsa_accum_offset {accum}
  .amdhsa_group_segment_fixed_size 0
  .amdhsa_kernarg_size 80
  .amdhsa_user_sgpr_count 2
  .amdhsa_user_sgpr_kernarg_segment_ptr 1
  .amdhsa_system_sgpr_workgroup_id_x 1
.end_amdhsa_kernel"""


def add64(dst, src, imm):
    e(f"s_add_u32 s{dst}, s{src}, {imm}")
    e(f"s_addc_u32 s{dst + 1}, s{src + 1}, 0")


def add64s(dst, src, sreg):
    e(f"s_add_u32 s{dst}, s{src}, s{sreg}")
    e(f"s_addc_u32 s{dst + 1}, s{src + 1}, 0")


def csel(dst, tv, fv):
    e(f"s_mov_b32 s{dst}, {fv}")
    e(f"s_cmov_b32 s{dst}, {tv}")


def pc_addr(dst, label):
    e(f"s_getpc_b64 s[{dst}:{dst + 1}]")
    e(f"s_add_u32 s{dst}, s{dst}, {label}@rel32@lo+4")
    e(f"s_addc_u32 s{dst + 1}, s{dst + 1}, {label}@rel32@hi+12")


import os
INSTR = os.environ.get("INSTR", "")
K1PF = int(os.environ.get("K1PF", "0"))
PREFETCH = int(os.environ.get("PREFETCH", "1"))
SELFPF = int(os.environ.get("SELFPF", "0"))
NP = int(os.environ.get("NP", "4"))
K1INIT = int(os.environ.get("K1INIT", "3"))
WTPOL = os.environ.get("WTPOL", "")
_st = [0]


def stamp():
    if INSTR:
        n = _st[0]
        e("s_memtime s[90:91]")
        e("s_waitcnt lgkmcnt(0)")
        e(f"s_mov_b32 s{70 + n}, s90")
        _st[0] += 1


def stamp_flush(wavereg, nslots=16):
    if INSTR:
        n = _st[0]
        e("s_load_dwordx2 s[90:91], s[0:1], 64")
        e("s_waitcnt lgkmcnt(0)")
        e(f"s_cmp_lg_u32 s{wavereg}, 0")
        e(f"s_cbranch_scc1 stampskip{len(L)}")
        lab = f"stampskip{len(L) - 1}"
        e("s_and_b32 s92, s2, 63")
        e("s_cmp_lg_u32 s92, 5")
        e(f"s_cbranch_scc1 {lab}")
        e("s_lshr_b32 s92, s2, 6")
        e("s_lshl_b32 s92, s92, 6")
        e("v_mov_b32 v1, s92")
        for i in range(n):
            e(f"s_sub_u32 s88, s{70 + i}, s70")
            e("v_mov_b32 v2, s88")
            e(f"global_store_dword v1, v2, s[90:91] offset:{4 * i}")
        e(f"{lab}:")


PROF = 0xF00000


PROFV = 164


def prof_start():
    if INSTR:
        e("s_memrealtime s[94:95]")
        e("v_readfirstlane_b32 s93, v0")


def prof_end(kidx):
    if INSTR:
        e("s_mov_b64 exec, -1")
        e("s_waitcnt vmcnt(0) lgkmcnt(0)")
        e("s_memrealtime s[90:91]")
        e("s_waitcnt lgkmcnt(0)")
        e("v_mov_b32 v2, s94")
        e("v_mov_b32 v3, s90")
        e("s_lshl_b32 s92, s2, 7")
        e(f"s_add_u32 s92, s92, {PROF + kidx * 65536}")
        e("s_lshr_b32 s89, s93, 6")
        e("s_lshl_b32 s89, s89, 3")
        e("s_add_u32 s92, s92, s89")
        e("v_mov_b32 v4, s92")
        e("global_store_dwordx2 v4, v[2:3], s[18:19]")


class Cnt:
    def __init__(self, name, maxv):
        self.name, self.maxv, self.n = name, maxv, 0
        self.done = 0

    def issue(self, k=1):
        self.n += k
        return self.n

    def wait(self, ticket):
        if ticket <= self.done:
            return
        allowed = self.n - ticket
        if allowed > self.maxv:
            allowed = self.maxv
        e(f"s_waitcnt {self.name}({allowed})")
        self.done = self.n - allowed

    def reset(self):
        self.n = 0
        self.done = 0


QSCALE = (28.0 ** -0.5) * math.log2(math.e)


K1_XS = 16384
K1_BS = 14336
K1_BOFF = 5 * K1_XS
K1_LDS = K1_BOFF + 5 * K1_BS


def k1():
    name = "k1_kernel"
    header(name)
    AF = 32
    ACC = 48
    BF = 104
    RB = 104
    e("s_cmp_ge_u32 s2, 256")
    e("s_cbranch_scc1 k1_end")
    stamp()
    prof_start()
    e("s_load_dwordx4 s[4:7], s[0:1], 0")
    e("s_load_dwordx2 s[12:13], s[0:1], 16")
    e("s_load_dwordx4 s[8:11], s[0:1], 32")
    e("s_load_dwordx2 s[18:19], s[0:1], 72")
    e("s_load_dwordx2 s[14:15], s[0:1], 48")
    e("s_and_b32 s20, s2, 7")
    e("s_lshr_b32 s21, s2, 3")
    e("s_lshr_b32 s22, s20, 1")
    e("s_and_b32 s23, s21, 3")
    e("s_lshl_b32 s23, s23, 2")
    e("s_add_u32 s22, s22, s23")
    e("s_and_b32 s23, s20, 1")
    e("s_lshl_b32 s23, s23, 3")
    e("s_lshr_b32 s24, s21, 2")
    e("s_add_u32 s23, s23, s24")
    e("v_lshrrev_b32 v1, 6, v0")
    e("v_and_b32 v2, 63, v0")
    e("v_readfirstlane_b32 s69, v1")
    e("v_and_b32 v3, 15, v2")
    e("v_lshrrev_b32 v4, 4, v2")
    e("s_mov_b32 s24, s69")
    if SELFPF:
        pc_addr(84, "k1_kernel")
        e("s_mov_b32 s86, k1_code_end-k1_kernel")
        e("s_mov_b32 s87, 0x00020000")
        e("v_lshlrev_b32 v8, 4, v0")
        e("buffer_load_dwordx4 v[164:167], v8, s[84:87], 0 offen")
    e("s_cmp_lt_u32 s69, 4")
    e("s_cbranch_scc1 k1_consumer")
    e("s_sub_u32 s24, s69, 4")
    e("s_lshl_b32 s25, s23, 7")
    e("s_lshr_b32 s26, s23, 2")
    e("s_and_b32 s26, s26, 1")
    e("s_lshl_b32 s26, s26, 10")
    e("s_and_b32 s27, s23, 3")
    e("s_lshl_b32 s27, s27, 8")
    e("s_add_u32 s26, s26, s27")
    e("s_lshr_b32 s27, s23, 3")
    e("s_lshl_b32 s27, s27, 4")
    e("s_add_u32 s26, s26, s27")
    e("s_cmp_ge_u32 s22, 12")
    e("s_cselect_b32 s25, s26, s25")
    csel(26, 896, 8 * 896)
    csel(27, 32 * 896, 896)
    csel(34, 401408, 1204224)
    csel(36, 896, 2688)
    e("s_cselect_b32 s37, 12, 0")
    e("s_mul_i32 s25, s25, 896")
    e("s_mul_i32 s28, s24, s26")
    e("s_add_u32 s25, s25, s28")
    e(f"s_lshl_b32 s26, s26, {2 if NP == 4 else 3}")
    e("v_lshrrev_b32 v5, 3, v2")
    e("v_mul_lo_u32 v5, v5, s27")
    e("s_and_b32 s28, s24, 1")
    e("s_lshl_b32 s28, s28, 2")
    e("v_add_u32 v6, s28, v4")
    e("v_and_b32 v7, 7, v2")
    e("v_xor_b32 v6, v6, v7")
    e("v_lshl_add_u32 v5, v6, 4, v5")
    e("s_mov_b32 s35, 0x00020000")
    e("s_sub_u32 s37, s22, s37")
    e("s_mul_i32 s37, s37, 224")
    e("s_mov_b32 s58, 1835008")
    e("s_mov_b32 s59, 0x00020000")
    e("v_mul_u32_u24 v7, 147, v2")
    e("v_lshrrev_b32 v7, 11, v7")
    e("v_mul_u32_u24 v8, 14, v7")
    e("v_sub_u32 v8, v2, v8")
    e("v_mul_lo_u32 v7, v7, s36")
    e("v_lshl_add_u32 v7, v8, 4, v7")
    e("s_lshr_b32 s38, s24, 1")
    e("s_and_b32 s38, s38, 1")
    e("s_xor_b32 s38, s38, s24")
    e("s_mul_i32 s38, s38, s36")
    e("s_lshl_b32 s38, s38, 2")
    e("s_add_u32 s38, s38, s37")
    e(f"s_lshl_b32 s39, s36, {4 if NP == 4 else 5}")
    e("s_mul_i32 s40, s24, 896")
    e(f"s_add_u32 s40, s40, {K1_BOFF}")
    e("s_lshl_b32 s41, s24, 10")
    pc_addr(28, "tab_F")
    e("s_waitcnt lgkmcnt(0)")
    e("s_cmp_ge_u32 s22, 12")
    e("s_cselect_b32 s32, s28, s8")
    e("s_cselect_b32 s33, s29, s9")
    e("s_mov_b32 s56, s4")
    e("s_mov_b32 s57, s5")
    vm = Cnt("vmcnt", 63)
    ck = {}
    if SELFPF: vm.issue(1)

    def issue_chunk(c):
        slot = c % 5
        for ee in range(16 // NP):
            e(f"s_add_u32 m0, s41, {slot * K1_XS + ee * NP * 1024}")
            e(f"s_add_u32 s42, s25, {c * 128}" if ee == 0 else "s_add_u32 s42, s42, s26")
            e("buffer_load_dwordx4 v5, s[56:59], s42 offen lds")
        e("s_mov_b32 exec_hi, 0x00ffffff")
        for ee in range(16 // NP):
            e(f"s_add_u32 m0, s40, {slot * K1_BS + ee * NP * 896}")
            e("s_nop 0")
            e("buffer_load_dwordx4 v7, s[32:35], s38 offen lds")
            e("s_add_u32 s38, s38, s39")
        e("s_mov_b32 exec_hi, -1")
        ck[c] = vm.issue(32 // NP)

    for c in range(K1INIT):
        issue_chunk(c)
    GW = 48
    e("v_lshlrev_b32 v18, 3, v3")
    for c in range(7):
        e(f"global_load_dwordx2 {vr(GW + 2 * c, 2)}, v18, s[14:15] offset:{c * 128}")
    tgw = vm.issue(7)
    e("s_and_b32 s62, s22, 7")
    e("s_lshl_b32 s62, s62, 4")
    e("s_and_b32 s63, s24, 3")
    e("s_lshl_b32 s63, s63, 2")
    e("s_add_u32 s62, s62, s63")
    e("v_add_u32 v19, s62, v4")
    e("v_bfe_u32 v20, v19, 1, 3")
    e("v_lshrrev_b32 v21, 1, v3")
    e("v_xor_b32 v20, v20, v21")
    e("v_lshlrev_b32 v20, 4, v20")
    e("v_lshl_add_u32 v20, v19, 7, v20")
    e("v_and_b32 v21, 1, v3")
    e("v_lshl_add_u32 v20, v21, 3, v20")
    e(f"v_add_u32 v21, {3 * K1_XS}, v20")
    e("v_mov_b32 v22, 0")
    for c in range(7):
        vm.wait(ck[c])
        e("s_barrier")
        slot = c % 5
        e(f"ds_read_b64 v[24:25], v{20 if slot < 3 else 21} offset:{(slot if slot < 3 else slot - 3) * K1_XS}")
        if c == 0:
            for cc in range(K1INIT, 4):
                issue_chunk(cc)
        if c == 1:
            issue_chunk(4)
        if c in (2, 3):
            issue_chunk(c + 3)
        vm.wait(tgw)
        e("s_waitcnt lgkmcnt(0)")
        e(f"v_dot2_f32_bf16 v22, v24, v{GW + 2 * c}, v22")
        e(f"v_dot2_f32_bf16 v22, v25, v{GW + 2 * c + 1}, v22")
    e("s_barrier")
    e("s_cmp_ge_u32 s22, 8")
    e("s_cbranch_scc1 k1_prod_end")
    e("s_cmp_ge_u32 s24, 4")
    e("s_cbranch_scc1 k1_prod_end")
    e("s_nop 1")
    for sh in (1, 2, 4, 8):
        e(f"v_add_f32_dpp v22, v22, v22 row_ror:{sh} row_mask:0xf bank_mask:0xf")
        e("s_nop 1")
    e(f"s_mov_b32 s27, {f32_bits(-math.log2(math.e)):#x}")
    e("v_mul_f32 v22, s27, v22")
    e("v_exp_f32 v22, v22")
    e("s_lshl_b32 s26, s23, 9")
    e(f"s_add_u32 s26, s26, {GATE}")
    e("v_add_f32 v22, 1.0, v22")
    e("v_rcp_f32 v22, v22")
    add64s(32, 18, 26)
    e("v_lshlrev_b32 v19, 2, v19")
    e("global_store_dword v19, v22, s[32:33]")
    e("k1_prod_end:")
    if PREFETCH:
        e(f"s_lshl_b32 s26, s21, {2 if NP == 4 else 3}")
        e("s_add_u32 s26, s26, s24")
        e("s_lshl_b32 s26, s26, 10")
        e("v_lshlrev_b32 v8, 4, v2")
        pc_addr(52, "tab_B64")
        e("s_mov_b32 s54, tab_end-tab_B64")
        e("s_mov_b32 s55, 0x00020000")
        e("buffer_load_dwordx4 v[24:27], v8, s[52:55], s26 offen")
        pc_addr(56, "k2_kernel")
        e("s_mov_b32 s58, k3_kernel-k2_kernel")
        e("s_mov_b32 s59, 0x00020000")
        e("buffer_load_dwordx4 v[28:31], v8, s[56:59], s26 offen")
    prof_end(0)
    e("s_endpgm")

    e("k1_consumer:")
    WO = 160
    e("s_waitcnt lgkmcnt(0)")
    WJ = 104
    e("s_lshl_b32 s44, s2, 2")
    e("s_add_u32 s44, s44, s24")
    e("s_and_b32 s45, s44, 7")
    e("s_lshr_b32 s46, s44, 3")
    e("s_and_b32 s46, s46, 3")
    e("s_lshr_b32 s44, s44, 5")
    e("s_lshl_b32 s44, s44, 1")
    e("s_lshl_b32 s46, s46, 6")
    e("v_add_u32 v16, s46, v2")
    e("v_lshlrev_b32 v17, 13, v16")
    e("v_cmp_gt_u32 vcc, 0xe1, v16")
    e("s_mov_b64 s[64:65], vcc")
    e("v_lshlrev_b32 v16, 1, v16")
    e("s_lshl_b32 s46, s45, 8")
    e("s_add_u32 s46, s46, s44")
    e("s_mul_i32 s46, s46, 450")
    e("s_mov_b32 s48, s6")
    e("s_mov_b32 s49, s7")
    e("s_mov_b32 s50, 921600")
    e("s_mov_b32 s51, 0x00020000")
    e("s_mov_b32 s52, s12")
    e("s_mov_b32 s53, s13")
    e("s_mov_b32 s54, 921600")
    e("s_mov_b32 s55, 0x00020000")
    e("s_lshl_b32 s45, s45, 10")
    e("s_lshl_b32 s44, s44, 4")
    e("s_add_u32 s45, s45, s44")
    e(f"s_add_u32 s45, s45, {WT}")
    add64s(60, 18, 45)
    e("s_mov_b64 exec, s[64:65]")
    for ee in range(2):
        for r in range(4):
            e(f"s_add_u32 s47, s46, {(64 * r + ee) * 450}")
            e(f"buffer_load_ushort v{WJ + ee * 4 + r}, v16, s[48:51], s47 offen")
            e(f"buffer_load_ushort v{WJ + 8 + ee * 4 + r}, v16, s[52:55], s47 offen")
    e("s_mov_b64 exec, -1")
    e("s_lshl_b32 s26, s2, 2")
    e("s_add_u32 s26, s26, s24")
    e("s_cmp_ge_u32 s26, 392")
    e("s_cbranch_scc1 k1_nowo")
    e("v_mul_u32_u24 v6, 8*896, v4")
    e("v_lshl_add_u32 v6, v3, 1, v6")
    e("v_add_u32 v7, 4*896, v6")
    e("s_mul_i32 s27, s26, 4682")
    e("s_lshr_b32 s27, s27, 16")
    e("s_mul_i32 s28, s27, 14")
    e("s_sub_u32 s28, s26, s28")
    e(f"s_mul_i32 s28, s28, {32 * 896}")
    e("s_lshl_b32 s27, s27, 5")
    e("s_add_u32 s28, s28, s27")
    add64s(30, 10, 28)
    for j in range(8):
        e(f"global_load_ushort v{WO + j}, v{6 + (j >> 2)}, s[30:31] offset:{(j & 3) * 896}")
    e("k1_nowo:")
    e("v_and_b32 v8, 1, v4")
    e("v_lshl_add_u32 v9, v4, 1, v8")
    e("v_xor_b32 v8, 1, v8")
    e("v_lshl_add_u32 v10, v4, 1, v8")
    e("v_mul_u32_u24 v9, 896, v9")
    e("v_mul_u32_u24 v10, 896, v10")
    e("v_lshrrev_b32 v8, 2, v3")
    e("v_mul_u32_u24 v8, 224, v8")
    e("v_and_b32 v11, 3, v3")
    e("v_lshl_add_u32 v8, v11, 3, v8")
    e(f"v_add_u32 v8, {K1_BOFF}, v8")
    e("v_add_u32 v20, v9, v8")
    e("v_add_u32 v21, v10, v8")
    e("v_lshrrev_b32 v8, 1, v3")
    e("v_xor_b32 v8, v8, v4")
    e("v_lshlrev_b32 v11, 7, v3")
    e("s_lshl_b32 s43, s24, 12")
    e("v_add_u32 v11, s43, v11")
    e("v_lshl_add_u32 v22, v8, 4, v11")
    e("v_xor_b32 v23, 64, v22")
    e("v_mov_b32 v9, v20")
    e("v_mov_b32 v10, v21")
    e("v_mov_b32 v12, v22")
    e("v_mov_b32 v13, v23")
    for r in range(56):
        e(f"v_mov_b32 v{ACC + r}, 0")
    e("s_mov_b32 s44, 0")
    e("s_mov_b32 s45, 7")
    e("s_mul_i32 s43, s24, 9216")
    e(f"s_add_u32 s43, s43, {2 * K1_XS}")

    def mainloop(transposed, lab):
        lg = Cnt("lgkmcnt", 15)
        tk = {}

        def rdA(kk, areg):
            for t in range(2):
                e(f"ds_read_b128 {vr(AF + (kk * 2 + t) * 4, 4)}, v{areg} offset:{t * 2048}")
                tk[("A", kk, t)] = lg.issue()

        def rdB(kk, jn, b0, b1):
            off = kk * 7168 + jn * 32
            b = BF + kk * 28 + jn * 4
            e(f"ds_read_b64_tr_b16 {vr(b, 2)}, v{b0} offset:{off}")
            e(f"ds_read_b64_tr_b16 {vr(b + 2, 2)}, v{b1} offset:{off}")
            tk[("B", kk, jn)] = lg.issue(2)

        def half(kk):
            for jn in range(7):
                lg.wait(max(tk[("A", kk, 0)], tk[("A", kk, 1)], tk[("B", kk, jn)]))
                for t in range(2):
                    acc = vr(ACC + (t * 7 + jn) * 4, 4)
                    xf = vr(AF + (kk * 2 + t) * 4, 4)
                    bf = vr(BF + kk * 28 + jn * 4, 4)
                    if transposed:
                        e(f"v_mfma_f32_16x16x32_bf16 {acc}, {bf}, {xf}, {acc}")
                    else:
                        e(f"v_mfma_f32_16x16x32_bf16 {acc}, {xf}, {bf}, {acc}")
                if kk == 0:
                    if jn == 0:
                        rdA(1, 13)
                    rdB(1, jn, 9, 10)
                else:
                    if jn == 0:
                        rdA(0, 12)
                    rdB(0, jn, 9, 10)

        e("s_barrier")
        stamp()
        rdA(0, 12)
        for jn in range(7):
            rdB(0, jn, 9, 10)
        e(f"{lab}:")
        lg.done = lg.n - 16
        half(0)
        e("s_add_u32 s44, s44, 1")
        e("s_cmp_eq_u32 s44, 5")
        e("s_cmov_b32 s44, 0")
        e(f"s_mul_i32 s46, s44, {K1_XS}")
        e(f"s_mul_i32 s47, s44, {K1_BS}")
        e("v_add_u32 v12, s46, v22")
        e("v_add_u32 v13, s46, v23")
        e("v_add_u32 v9, s47, v20")
        e("v_add_u32 v10, s47, v21")
        e("s_barrier")
        half(1)
        e("s_sub_u32 s45, s45, 1")
        e("s_cmp_lg_u32 s45, 0")
        e(f"s_cbranch_scc1 {lab}")
        e("s_waitcnt lgkmcnt(0)")
        e("s_nop 3")

    def out_base(region_sreg):
        e("s_and_b32 s62, s22, 3")
        e("s_lshl_b32 s62, s62, 19")
        e(f"s_add_u32 s{region_sreg}, s{region_sreg}, s62")
        e("s_lshl_b32 s62, s23, 2")
        e("s_add_u32 s62, s62, s24")
        e("s_lshl_b32 s62, s62, 11")
        e(f"s_add_u32 s{region_sreg}, s{region_sreg}, s62")
        add64s(62, 18, region_sreg)
        e("v_lshlrev_b32 v19, 4, v2")

    def out_store(fix):
        for hl in range(4):
            if hl:
                e("v_add_u32 v19, 0x20000, v19")
            for ks in range(2):
                n = hl * 2 + ks
                e(f"s_waitcnt lgkmcnt({7 - n})")
                if fix and ks == 1:
                    e("s_mov_b32 exec_lo, 0")
                    e(f"v_mov_b32 v{RB + n * 4 + 2}, 0")
                    e(f"v_mov_b32 v{RB + n * 4 + 3}, 0")
                    e("s_mov_b32 exec_lo, -1")
                e(f"global_store_dwordx4 v19, {vr(RB + n * 4, 4)}, s[62:63] offset:{ks * 1024}")

    e("s_waitcnt vmcnt(0)")
    for r in range(8):
        e(f"v_lshl_or_b32 v{WJ + r}, v{WJ + 8 + r}, 16, v{WJ + r}")
    e("s_mov_b64 exec, s[64:65]")
    for ee in range(2):
        e(f"global_store_dwordx4 v17, {vr(WJ + 4 * ee, 4)}, s[60:61] offset:{16 * ee}{WTPOL}")
    e("s_mov_b64 exec, -1")
    e("s_cmp_ge_u32 s26, 392")
    e("s_cbranch_scc1 k1_nowo2")
    e("s_lshl_b32 s27, s26, 10")
    e(f"s_add_u32 s27, s27, {WOT}")
    add64s(30, 18, 27)
    e("v_lshlrev_b32 v6, 4, v2")
    for j in range(4):
        e(f"v_lshl_or_b32 v{WO + j}, v{WO + 1 + 2 * j}, 16, v{WO + 2 * j}")
    e(f"global_store_dwordx4 v6, {vr(WO, 4)}, s[30:31]{WTPOL}")
    e("k1_nowo2:")
    e("s_nop 1")
    e("s_cmp_ge_u32 s22, 8")
    e("s_cbranch_scc1 k1_normal")
    sv = _st[0]
    mainloop(True, "k1_loop_t")
    stamp()
    e("s_cmp_ge_u32 s22, 4")
    csel(64, KF, QF)
    e("s_cbranch_scc1 k1_noscale")
    e(f"s_mov_b32 s66, {f32_bits(QSCALE):#x}")
    e(f"s_mov_b32 s67, {f32_bits(QSCALE):#x}")
    for r in range(0, 56, 2):
        e(f"v_pk_mul_f32 {vr(ACC + r, 2)}, {vr(ACC + r, 2)}, s[66:67]")
    e("k1_noscale:")
    e("v_mul_u32_u24 v5, 240, v3")
    e("v_lshl_add_u32 v5, v4, 3, v5")
    e("v_add_u32 v5, s43, v5")
    for jn in range(7):
        for t in range(2):
            a = ACC + (t * 7 + jn) * 4
            e(f"v_cvt_pk_bf16_f32 v{a}, v{a}, v{a + 1}")
            e(f"v_cvt_pk_bf16_f32 v{a + 1}, v{a + 2}, v{a + 3}")
            e(f"ds_write_b64 v5, {vr(a, 2)} offset:{jn * 32 + t * 3840}")
    out_base(64)
    e("v_and_b32 v18, 31, v2")
    e("v_mul_u32_u24 v18, 240, v18")
    e("v_lshrrev_b32 v6, 5, v2")
    e("v_lshl_add_u32 v18, v6, 4, v18")
    e("v_add_u32 v18, s43, v18")
    e("s_waitcnt lgkmcnt(0)")
    stamp()
    for hl in range(4):
        for ks in range(2):
            o8 = 7 * hl + 4 * ks
            e(f"ds_read2_b64 {vr(RB + (hl * 2 + ks) * 4, 4)}, v18 offset0:{o8} offset1:{o8 + 1}")
    out_store(True)
    stamp()
    if INSTR: e("s_waitcnt vmcnt(0)")
    stamp()
    stamp_flush(69)
    prof_end(0)
    e("s_endpgm")
    _st[0] = sv
    e("k1_normal:")
    mainloop(False, "k1_loop_n")
    e("s_cmp_ge_u32 s22, 12")
    e("s_cbranch_scc1 k1_f")
    e(f"s_mov_b32 s64, {VF}")
    e("v_mul_u32_u24 v5, 80, v3")
    e("v_lshl_add_u32 v5, v4, 3, v5")
    e("v_add_u32 v5, s43, v5")
    for jn in range(7):
        for t in range(2):
            a = ACC + (t * 7 + jn) * 4
            e(f"v_cvt_pk_bf16_f32 v{a}, v{a}, v{a + 1}")
            e(f"v_cvt_pk_bf16_f32 v{a + 1}, v{a + 2}, v{a + 3}")
            e(f"ds_write_b64 v5, {vr(a, 2)} offset:{jn * 1280 + t * 32}")
    out_base(64)
    e("v_and_b32 v18, 31, v2")
    e("v_mul_u32_u24 v18, 80, v18")
    e("v_lshrrev_b32 v6, 5, v2")
    e("v_lshl_add_u32 v18, v6, 4, v18")
    e("v_add_u32 v18, s43, v18")
    for r in range(32):
        e(f"v_mov_b32 v{RB + r}, 0x3f803f80")
    e("s_waitcnt lgkmcnt(0)")
    e("s_mov_b32 exec_lo, 0x0fffffff")
    e("s_mov_b32 exec_hi, 0x0fffffff")
    for hl in range(4):
        for ks in range(2):
            e(f"ds_read_b128 {vr(RB + (hl * 2 + ks) * 4, 4)}, v18 offset:{hl * 28 * 80 + ks * 32}")
    e("s_mov_b64 exec, -1")
    out_store(False)
    prof_end(0)
    e("s_endpgm")
    e("k1_f:")
    e("v_lshlrev_b32 v5, 6, v3")
    e("v_lshl_add_u32 v5, v4, 3, v5")
    e("v_add_u32 v5, s43, v5")
    for jn in range(7):
        for t in range(2):
            a = ACC + (t * 7 + jn) * 4
            e(f"v_cvt_pk_bf16_f32 v{a}, v{a}, v{a + 1}")
            e(f"v_cvt_pk_bf16_f32 v{a + 1}, v{a + 2}, v{a + 3}")
            e(f"ds_write_b64 v5, {vr(a, 2)} offset:{jn * 1024 + t * 32}")
    e("s_sub_u32 s64, s22, 12")
    e(f"s_mul_i32 s64, s64, {112 * 4096}")
    e(f"s_add_u32 s64, s64, {YT}")
    e("s_lshl_b32 s62, s23, 8")
    e("s_add_u32 s64, s64, s62")
    e("s_lshl_b32 s62, s24, 6")
    e("s_add_u32 s64, s64, s62")
    add64s(62, 18, 64)
    e("v_lshlrev_b32 v18, 4, v2")
    e("v_add_u32 v18, s43, v18")
    e("v_lshrrev_b32 v19, 2, v2")
    e("v_lshlrev_b32 v19, 12, v19")
    e("v_and_b32 v6, 3, v2")
    e("v_lshl_add_u32 v19, v6, 4, v19")
    e("s_waitcnt lgkmcnt(0)")
    for n in range(7):
        e(f"ds_read_b128 {vr(RB + n * 4, 4)}, v18 offset:{n * 1024}")
    for n in range(7):
        if n:
            e("v_add_u32 v19, 0x10000, v19")
        e(f"s_waitcnt lgkmcnt({6 - n})")
        e(f"global_store_dwordx4 v19, {vr(RB + n * 4, 4)}, s[62:63]")
    prof_end(0)
    e("k1_end:")
    e("s_endpgm")
    e("k1_code_end:")
    return descriptor(name, 168)


def tables():
    T = []
    T.append('.section .rodata,"a"')
    for i in range(448):
        T.append(f".set TC_{i}, {bf16_bits(math.cos(2 * math.pi * i / 448)):#x}")
    sc = 2.0 / (2048 * 448)
    for i in range(448):
        T.append(f".set TG_{i}, {bf16_bits(sc * math.cos(2 * math.pi * i / 448)):#x}")
    T.append(""".altmacro
.macro emitc a
 .short TC_\\a
.endm
.macro emitg a
 .short TG_\\a
.endm
.macro emitgh a
 .short TG_\\a - 0x80
.endm
.p2align 8
tab_F:
.set dd, 0
.rept 448
 .set aa, 0
 .rept 225
  emitc %aa
  .set aa, (aa + dd) % 448
 .endr
 .set aa, (dd + 112) % 448
 .rept 223
  emitc %aa
  .set aa, (aa + dd) % 448
 .endr
 .set dd, dd+1
.endr
.p2align 8
tab_G:
.set ct, 0
.rept 28
 .set ks, 0
 .rept 14
  .set ln, 0
  .rept 64
   .set dc, 16*ct + (ln & 15)
   .set cc, 32*ks + 8*(ln >> 4)
   .rept 8
    .if cc == 0
     emitgh 0
    .elseif cc == 224
     emitgh %((224*dc) % 448)
    .elseif cc < 224
     emitg %((cc*dc) % 448)
    .else
     emitg %(((cc-224)*dc + 112) % 448)
    .endif
    .set cc, cc+1
   .endr
   .set ln, ln+1
  .endr
  .set ks, ks+1
 .endr
 .set ct, ct+1
.endr
.noaltmacro""")
    def emit_u16(vals):
        for i in range(0, len(vals), 16):
            w = [vals[j] | (vals[j + 1] << 16) for j in range(i, min(i + 16, len(vals)), 2)]
            T.append(".long " + ",".join(f"{x:#x}" for x in w))

    def emit_u32(vals):
        for i in range(0, len(vals), 8):
            T.append(".long " + ",".join(f"{x:#x}" for x in vals[i:i + 8]))

    T.append(".p2align 8\ntab_B64:")
    v = []
    for wv in range(4):
        for ty in range(3):
            for ks in range(2):
                for l in range(64):
                    n = 16 * wv + (l & 15)
                    for j in range(8):
                        k = 32 * ks + 8 * (l >> 4) + j
                        ang = 2 * math.pi * ((n * k) % 64) / 64
                        val = math.cos(ang) if ty == 0 else (math.sin(ang) if ty == 1 else -math.sin(ang))
                        if abs(val) < 1e-9: val = 0.0
                        v.append(bf16_bits(val))
    emit_u16(v)
    T.append(".p2align 8\ntab_A32:")
    v = []
    for ty in range(2):
        for mt in range(2):
            for l in range(64):
                m = 16 * mt + (l & 15)
                g = l >> 4
                for j in range(8):
                    n2 = 4 * g + j if j < 4 else 16 + 4 * g + j - 4
                    ang = 2 * math.pi * ((m * n2) % 32) / 32
                    val = math.cos(ang) if ty == 0 else math.sin(ang)
                    if abs(val) < 1e-9: val = 0.0
                    v.append(bf16_bits(val))
    emit_u16(v)
    T.append(".p2align 8\ntab_TW:")
    v = []
    for wv in range(4):
        for mt in range(2):
            for cs in range(2):
                for l in range(64):
                    f1 = 16 * wv + (l & 15)
                    g = l >> 4
                    for r in range(4):
                        n2 = 16 * mt + 4 * g + r
                        ang = 2 * math.pi * ((n2 * f1) % 2048) / 2048
                        v.append(f32_bits(math.cos(ang) if cs == 0 else math.sin(ang)))
    emit_u32(v)
    T.append("tab_end:")
    return "\n".join(T)


def main():
    which = sys.argv[1] if len(sys.argv) > 1 else "123"
    launches = []
    descs = []
    if "1" in which:
        launches.append(f"; @launch kernel=k1_kernel grid=(256,1,1) block=({256 + 64 * NP},1,1) lds=153600")
    if "2" in which:
        launches.append("; @launch kernel=k2_kernel grid=(256,1,1) block=(512,1,1) lds=57600")
    if "3" in which:
        launches.append("; @launch kernel=k3_kernel grid=(224,1,1) block=(1024,1,1) lds=131072")
    print("\n".join(launches))
    print('.amdgcn_target "amdgcn-amd-amdhsa--gfx950"\n.text')
    if "1" in which:
        descs.append(k1())
    if "2" in which:
        from gen_k2 import k2
        descs.append(k2())
    if "3" in which:
        from gen_k3 import k3
        descs.append(k3())
    print("\n".join(L))
    print(tables())
    print("\n".join(descs))


if __name__ == "__main__":
    import gen
    gen.main()
```

```python
from gen import *
import gen
import os

K3_U = 0
K3_O = 57344
K3_X = 114688
K3_LDS = 131072
K3INIT = int(os.environ.get("K3INIT", "3"))


def k3():
    name = "k3_kernel"
    header(name)
    gen._st[0] = 0
    AF, ACC, BFR = 16, 72, 88
    e("s_cmp_ge_u32 s2, 224")
    e("s_cbranch_scc1 k3_end")
    stamp()
    prof_start()
    e("s_load_dwordx2 s[18:19], s[0:1], 72")
    e("s_load_dwordx2 s[16:17], s[0:1], 56")
    e("v_lshrrev_b32 v1, 6, v0")
    e("v_and_b32 v2, 63, v0")
    e("v_readfirstlane_b32 s24, v1")
    e("v_lshlrev_b32 v3, 4, v2")
    e("s_and_b32 s20, s2, 7")
    e("s_lshr_b32 s21, s2, 3")
    e("s_mul_i32 s22, s21, 37")
    e("s_lshr_b32 s22, s22, 8")
    e("s_mul_i32 s23, s22, 7")
    e("s_sub_u32 s23, s21, s23")
    e("s_lshl_b32 s20, s20, 2")
    e("s_add_u32 s22, s22, s20")
    e("s_and_b32 s25, s24, 3")
    e("s_bfe_u32 s26, s24, 0x10002")
    e("s_cmp_lt_u32 s24, 8")
    e("s_cbranch_scc1 k3_compute")
    e("s_sub_u32 s24, s24, 8")
    e("v_lshrrev_b32 v6, 3, v2")
    e("v_lshlrev_b32 v6, 12, v6")
    e("v_bfe_u32 v7, v2, 4, 1")
    e("s_and_b32 s27, s24, 1")
    e("s_lshl_b32 s27, s27, 1")
    e("v_or_b32 v7, s27, v7")
    e("v_lshlrev_b32 v7, 1, v7")
    e("v_and_b32 v8, 7, v2")
    e("v_xor_b32 v7, v7, v8")
    e("v_lshl_add_u32 v6, v7, 4, v6")
    e("s_mov_b32 s30, 0x1000000")
    e("s_mov_b32 s31, 0x00020000")
    e("s_lshl_b32 s32, s24, 15")
    e("s_lshl_b32 s33, s22, 7")
    e("s_add_u32 s32, s32, s33")
    e(f"s_add_u32 s32, s32, {UT}")
    e("s_lshl_b32 s33, s22, 2")
    e("s_add_u32 s33, s33, s25")
    e("s_mul_i32 s33, s33, 14336")
    e("s_lshl_b32 s34, s26, 10")
    e("s_add_u32 s33, s33, s34")
    e(f"s_add_u32 s33, s33, {OB}")
    e("s_lshl_b32 s35, s24, 10")
    e("s_mul_i32 s36, s25, 14336")
    e("s_add_u32 s36, s36, s34")
    e(f"s_add_u32 s36, s36, {K3_O}")
    e("s_waitcnt lgkmcnt(0)")
    e("s_mov_b32 s28, s18")
    e("s_mov_b32 s29, s19")
    vm = Cnt("vmcnt", 63)
    ck = {}

    def issue(ee):
        e(f"s_add_u32 m0, s35, {K3_U + ee * 8192}")
        e(f"s_add_u32 s41, s32, {ee * 8 * 32768}")
        e("buffer_load_dwordx4 v6, s[28:31], s41 offen lds")
        e(f"s_add_u32 m0, s36, {ee * 2048}")
        e(f"s_add_u32 s41, s33, {ee * 2048}")
        e("buffer_load_dwordx4 v3, s[28:31], s41 offen lds")
        ck[ee] = vm.issue(2)

    for ee in range(K3INIT):
        issue(ee)
    for ee in range(7):
        vm.wait(ck[ee])
        e("s_barrier")
        if ee + K3INIT < 7:
            issue(ee + K3INIT)
    prof_end(2)
    e("s_endpgm")
    e("k3_compute:")
    e("v_and_b32 v4, 15, v2")
    e("v_lshrrev_b32 v5, 4, v2")
    pc_addr(38, "tab_G")
    e("s_lshl_b32 s40, s23, 2")
    e("s_add_u32 s40, s40, s25")
    e("s_mul_i32 s44, s40, 14336")
    e("s_lshl_b32 s41, s22, 8")
    e(f"s_add_u32 s41, s41, {GATE}")
    e("v_lshlrev_b32 v7, 2, v4")
    e("s_waitcnt lgkmcnt(0)")
    add64(42, 18, WOT)
    e("s_cmp_eq_u32 s26, 0")
    e("s_cselect_b32 s38, s38, s42")
    e("s_cselect_b32 s39, s39, s43")
    add64s(38, 38, 44)
    for ks in range(14):
        if ks and ks % 4 == 0:
            e("s_add_u32 s38, s38, 4096")
            e("s_addc_u32 s39, s39, 0")
        e(f"global_load_dwordx4 {vr(AF + ks * 4, 4)}, v3, s[38:39] offset:{(ks % 4) * 1024}")
    add64s(42, 18, 41)
    for rt in range(4):
        e(f"global_load_dword v{12 + rt}, v7, s[42:43] offset:{rt * 64}")
    e("s_lshl_b32 s41, s25, 12")
    e(f"s_add_u32 s41, s41, {K3_X}")
    e("v_add_u32 v6, s41, v3")
    stamp()
    e("s_cmp_eq_u32 s26, 1")
    e("s_cbranch_scc1 k3_opart")
    e("v_lshrrev_b32 v7, 2, v4")
    e("v_lshl_add_u32 v7, v5, 3, v7")
    e("v_lshlrev_b32 v7, 7, v7")
    e("v_and_b32 v8, 3, v4")
    e("v_lshl_add_u32 v7, v8, 3, v7")
    e("v_lshrrev_b32 v8, 3, v4")
    e("v_and_b32 v9, 1, v5")
    e("v_lshl_or_b32 v8, v9, 1, v8")
    e("v_lshl_add_u32 v8, v8, 5, v7")
    e("v_xor_b32 v9, 32, v8")
    e("v_xor_b32 v10, 64, v8")
    e("v_xor_b32 v11, 96, v8")
    e("v_mul_u32_u24 v7, 896, v4")
    e("v_lshl_add_u32 v7, v5, 3, v7")
    e(f"s_mul_i32 s41, s22, {64 * 896}")
    e("s_lshl_b32 s40, s40, 5")
    e("s_add_u32 s41, s41, s40")
    add64s(46, 16, 41)

    def compute(part):
        lg = Cnt("lgkmcnt", 15)
        tk = {}

        def rd(ks):
            st = ks & 1
            for rt in range(4):
                b = BFR + (st * 4 + rt) * 4
                if part == 0:
                    for t2 in range(2):
                        e(f"ds_read_b64_tr_b16 {vr(b + 2 * t2, 2)}, v{8 + rt} offset:{K3_U + ks * 4096 + t2 * 512}")
                    tk[(ks, rt)] = lg.issue(2)
                else:
                    e(f"ds_read_b128 {vr(b, 4)}, v8 offset:{rt * 14336 + ks * 1024}")
                    tk[(ks, rt)] = lg.issue(1)

        e("s_barrier")
        stamp()
        rd(0)
        for ks in range(14):
            if ks + 1 < 14:
                if (ks + 1) % 2 == 0:
                    e("s_barrier")
                rd(ks + 1)
            e(f"s_waitcnt vmcnt({4 + 13 - ks})")
            for rt in range(4):
                lg.wait(tk[(ks, rt)])
                b = BFR + ((ks & 1) * 4 + rt) * 4
                acc = vr(ACC + 4 * rt, 4)
                e(f"v_mfma_f32_16x16x32_bf16 {acc}, {vr(AF + ks * 4, 4)}, {vr(b, 4)}, {'0' if ks == 0 else acc}")

    compute(0)
    stamp()
    e("s_barrier")
    for rt in range(4):
        e(f"ds_read_b128 {vr(BFR + 4 * rt, 4)}, v6 offset:{rt * 1024}")
    e("s_waitcnt vmcnt(0)")
    for rt in range(4):
        e(f"s_waitcnt lgkmcnt({3 - rt})")
        for r in range(4):
            a, b = ACC + 4 * rt + r, BFR + 4 * rt + r
            e(f"v_sub_f32 v{a}, v{a}, v{b}")
            e(f"v_fma_f32 v{a}, v{12 + rt}, v{a}, v{b}")
        a = ACC + 4 * rt
        e(f"v_cvt_pk_bf16_f32 v{a}, v{a}, v{a + 1}")
        e(f"v_cvt_pk_bf16_f32 v{a + 1}, v{a + 2}, v{a + 3}")
        if rt:
            e(f"v_add_u32 v7, {16 * 896}, v7")
        e(f"global_store_dwordx2 v7, {vr(a, 2)}, s[46:47]")
    stamp()
    if INSTR:
        e("s_waitcnt vmcnt(0)")
    stamp()
    stamp_flush(24)
    prof_end(2)
    e("s_endpgm")
    e("k3_opart:")
    gen._st[0] = 2
    e(f"v_add_u32 v8, {K3_O}, v3")
    compute(1)
    e("s_nop 7")
    for rt in range(4):
        e(f"ds_write_b128 v6, {vr(ACC + 4 * rt, 4)} offset:{rt * 1024}")
    e("s_waitcnt lgkmcnt(0)")
    e("s_barrier")
    prof_end(2)
    e("k3_end:")
    e("s_endpgm")
    e("k3_code_end:")
    return descriptor(name, 120)
```

```python
import math, struct, sys
import numpy as np

QF = 0x000000
KF = 0x200000
VF = 0x400000
YT = 0x600000
WT = 0x800000
WOT = 0xA00000
GATE = 0xA80000
OB = 0xB00000
UT = 0xD00000

L = []


def e(s=""):
    L.append("  " + s if s and not s.endswith(":") else s)


def bf16_bits(x):
    u = struct.unpack("<I", struct.pack("<f", float(x)))[0]
    u = (u + 0x7FFF + ((u >> 16) & 1)) >> 16
    return u & 0xFFFF


def f32_bits(x):
    return struct.unpack("<I", struct.pack("<f", float(x)))[0]


def vr(a, n):
    return f"v[{a}:{a + n - 1}]" if n > 1 else f"v{a}"


def header(name):
    e(f".globl {name}")
    e(".p2align 8")
    e(f".type {name},@function")
    e(f"{name}:")


def descriptor(name, vgpr, sgpr=96, accum=None):
    if INSTR:
        pass
    if accum is None:
        accum = (vgpr + 3) // 4 * 4
    return f""".p2align 6
.amdhsa_kernel {name}
  .amdhsa_next_free_vgpr {vgpr}
  .amdhsa_next_free_sgpr {sgpr}
  .amdhsa_accum_offset {accum}
  .amdhsa_group_segment_fixed_size 0
  .amdhsa_kernarg_size 80
  .amdhsa_user_sgpr_count 2
  .amdhsa_user_sgpr_kernarg_segment_ptr 1
  .amdhsa_system_sgpr_workgroup_id_x 1
.end_amdhsa_kernel"""


def add64(dst, src, imm):
    e(f"s_add_u32 s{dst}, s{src}, {imm}")
    e(f"s_addc_u32 s{dst + 1}, s{src + 1}, 0")


def add64s(dst, src, sreg):
    e(f"s_add_u32 s{dst}, s{src}, s{sreg}")
    e(f"s_addc_u32 s{dst + 1}, s{src + 1}, 0")


def csel(dst, tv, fv):
    e(f"s_mov_b32 s{dst}, {fv}")
    e(f"s_cmov_b32 s{dst}, {tv}")


def pc_addr(dst, label):
    e(f"s_getpc_b64 s[{dst}:{dst + 1}]")
    e(f"s_add_u32 s{dst}, s{dst}, {label}@rel32@lo+4")
    e(f"s_addc_u32 s{dst + 1}, s{dst + 1}, {label}@rel32@hi+12")


import os
INSTR = os.environ.get("INSTR", "")
K1PF = int(os.environ.get("K1PF", "0"))
PREFETCH = int(os.environ.get("PREFETCH", "1"))
SELFPF = int(os.environ.get("SELFPF", "0"))
FMAP = int(os.environ.get("FMAP", "1"))
NP = int(os.environ.get("NP", "4"))
K1INIT = int(os.environ.get("K1INIT", "3"))
WTPOL = os.environ.get("WTPOL", "")
_st = [0]


def stamp():
    if INSTR:
        n = _st[0]
        e("s_memtime s[90:91]")
        e("s_waitcnt lgkmcnt(0)")
        e(f"s_mov_b32 s{70 + n}, s90")
        _st[0] += 1


def stamp_flush(wavereg, nslots=16):
    if INSTR:
        n = _st[0]
        e("s_load_dwordx2 s[90:91], s[0:1], 64")
        e("s_waitcnt lgkmcnt(0)")
        e(f"s_cmp_lg_u32 s{wavereg}, 0")
        e(f"s_cbranch_scc1 stampskip{len(L)}")
        lab = f"stampskip{len(L) - 1}"
        e("s_and_b32 s92, s2, 63")
        e("s_cmp_lg_u32 s92, 5")
        e(f"s_cbranch_scc1 {lab}")
        e("s_lshr_b32 s92, s2, 6")
        e("s_lshl_b32 s92, s92, 6")
        e("v_mov_b32 v1, s92")
        for i in range(n):
            e(f"s_sub_u32 s88, s{70 + i}, s70")
            e("v_mov_b32 v2, s88")
            e(f"global_store_dword v1, v2, s[90:91] offset:{4 * i}")
        e(f"{lab}:")


PROF = 0xF00000


PROFV = 164


def prof_start():
    if INSTR:
        e("s_memrealtime s[94:95]")
        e("v_readfirstlane_b32 s93, v0")


def prof_end(kidx):
    if INSTR:
        e("s_mov_b64 exec, -1")
        e("s_waitcnt vmcnt(0) lgkmcnt(0)")
        e("s_memrealtime s[90:91]")
        e("s_waitcnt lgkmcnt(0)")
        e("v_mov_b32 v2, s94")
        e("v_mov_b32 v3, s90")
        e("s_lshl_b32 s92, s2, 7")
        e(f"s_add_u32 s92, s92, {PROF + kidx * 65536}")
        e("s_lshr_b32 s89, s93, 6")
        e("s_lshl_b32 s89, s89, 3")
        e("s_add_u32 s92, s92, s89")
        e("v_mov_b32 v4, s92")
        e("global_store_dwordx2 v4, v[2:3], s[18:19]")


class Cnt:
    def __init__(self, name, maxv):
        self.name, self.maxv, self.n = name, maxv, 0
        self.done = 0

    def issue(self, k=1):
        self.n += k
        return self.n

    def wait(self, ticket):
        if ticket <= self.done:
            return
        allowed = self.n - ticket
        if allowed > self.maxv:
            allowed = self.maxv
        e(f"s_waitcnt {self.name}({allowed})")
        self.done = self.n - allowed

    def reset(self):
        self.n = 0
        self.done = 0


QSCALE = (28.0 ** -0.5) * math.log2(math.e)


K1_XS = 16384
K1_BS = 14336
K1_BOFF = 5 * K1_XS
K1_LDS = K1_BOFF + 5 * K1_BS


def k1():
    name = "k1_kernel"
    header(name)
    AF = 32
    ACC = 48
    BF = 104
    RB = 104
    e("s_cmp_ge_u32 s2, 256")
    e("s_cbranch_scc1 k1_end")
    stamp()
    prof_start()
    e("s_load_dwordx4 s[4:7], s[0:1], 0")
    e("s_load_dwordx2 s[12:13], s[0:1], 16")
    e("s_load_dwordx4 s[8:11], s[0:1], 32")
    e("s_load_dwordx2 s[18:19], s[0:1], 72")
    e("s_load_dwordx2 s[14:15], s[0:1], 48")
    e("s_and_b32 s20, s2, 7")
    e("s_lshr_b32 s21, s2, 3")
    e("s_lshr_b32 s22, s20, 1")
    e("s_and_b32 s23, s21, 3")
    e("s_lshl_b32 s23, s23, 2")
    e("s_add_u32 s22, s22, s23")
    e("s_and_b32 s23, s20, 1")
    e("s_lshl_b32 s23, s23, 3")
    e("s_lshr_b32 s24, s21, 2")
    e("s_add_u32 s23, s23, s24")
    if FMAP:
        e("s_and_b32 s25, s23, 3")
        e("s_lshr_b32 s26, s23, 3")
        e("s_lshl_b32 s26, s26, 2")
        e("s_or_b32 s25, s25, s26")
        e("s_bfe_u32 s26, s23, 0x10002")
        e("s_lshl_b32 s26, s26, 3")
        e("s_or_b32 s25, s25, s26")
        e("s_cmp_ge_u32 s22, 12")
        e("s_cselect_b32 s23, s25, s23")
    e("v_lshrrev_b32 v1, 6, v0")
    e("v_and_b32 v2, 63, v0")
    e("v_readfirstlane_b32 s69, v1")
    e("v_and_b32 v3, 15, v2")
    e("v_lshrrev_b32 v4, 4, v2")
    e("s_mov_b32 s24, s69")
    if SELFPF:
        pc_addr(84, "k1_kernel")
        e("s_mov_b32 s86, k1_code_end-k1_kernel")
        e("s_mov_b32 s87, 0x00020000")
        e("v_lshlrev_b32 v8, 4, v0")
        e("buffer_load_dwordx4 v[164:167], v8, s[84:87], 0 offen")
    e("s_cmp_lt_u32 s69, 4")
    e("s_cbranch_scc1 k1_consumer")
    e("s_sub_u32 s24, s69, 4")
    e("s_lshl_b32 s25, s23, 7")
    e("s_lshr_b32 s26, s23, 2")
    e("s_and_b32 s26, s26, 1")
    e("s_lshl_b32 s26, s26, 10")
    e("s_and_b32 s27, s23, 3")
    e("s_lshl_b32 s27, s27, 8")
    e("s_add_u32 s26, s26, s27")
    e("s_lshr_b32 s27, s23, 3")
    e("s_lshl_b32 s27, s27, 4")
    e("s_add_u32 s26, s26, s27")
    e("s_cmp_ge_u32 s22, 12")
    e("s_cselect_b32 s25, s26, s25")
    csel(26, 896, 8 * 896)
    csel(27, 32 * 896, 896)
    csel(34, 401408, 1204224)
    csel(36, 896, 2688)
    e("s_cselect_b32 s37, 12, 0")
    e("s_mul_i32 s25, s25, 896")
    e("s_mul_i32 s28, s24, s26")
    e("s_add_u32 s25, s25, s28")
    e(f"s_lshl_b32 s26, s26, {2 if NP == 4 else 3}")
    e("v_lshrrev_b32 v5, 3, v2")
    e("v_mul_lo_u32 v5, v5, s27")
    e("s_and_b32 s28, s24, 1")
    e("s_lshl_b32 s28, s28, 2")
    e("v_add_u32 v6, s28, v4")
    e("v_and_b32 v7, 7, v2")
    e("v_xor_b32 v6, v6, v7")
    e("v_lshl_add_u32 v5, v6, 4, v5")
    e("s_mov_b32 s35, 0x00020000")
    e("s_sub_u32 s37, s22, s37")
    e("s_mul_i32 s37, s37, 224")
    e("s_mov_b32 s58, 1835008")
    e("s_mov_b32 s59, 0x00020000")
    e("v_mul_u32_u24 v7, 147, v2")
    e("v_lshrrev_b32 v7, 11, v7")
    e("v_mul_u32_u24 v8, 14, v7")
    e("v_sub_u32 v8, v2, v8")
    e("v_mul_lo_u32 v7, v7, s36")
    e("v_lshl_add_u32 v7, v8, 4, v7")
    e("s_lshr_b32 s38, s24, 1")
    e("s_and_b32 s38, s38, 1")
    e("s_xor_b32 s38, s38, s24")
    e("s_mul_i32 s38, s38, s36")
    e("s_lshl_b32 s38, s38, 2")
    e("s_add_u32 s38, s38, s37")
    e(f"s_lshl_b32 s39, s36, {4 if NP == 4 else 5}")
    e("s_mul_i32 s40, s24, 896")
    e(f"s_add_u32 s40, s40, {K1_BOFF}")
    e("s_lshl_b32 s41, s24, 10")
    pc_addr(28, "tab_F")
    e("s_waitcnt lgkmcnt(0)")
    e("s_cmp_ge_u32 s22, 12")
    e("s_cselect_b32 s32, s28, s8")
    e("s_cselect_b32 s33, s29, s9")
    e("s_mov_b32 s56, s4")
    e("s_mov_b32 s57, s5")
    vm = Cnt("vmcnt", 63)
    ck = {}
    if SELFPF: vm.issue(1)

    def issue_chunk(c):
        slot = c % 5
        for ee in range(16 // NP):
            e(f"s_add_u32 m0, s41, {slot * K1_XS + ee * NP * 1024}")
            e(f"s_add_u32 s42, s25, {c * 128}" if ee == 0 else "s_add_u32 s42, s42, s26")
            e("buffer_load_dwordx4 v5, s[56:59], s42 offen lds")
        e("s_mov_b32 exec_hi, 0x00ffffff")
        for ee in range(16 // NP):
            e(f"s_add_u32 m0, s40, {slot * K1_BS + ee * NP * 896}")
            e("s_nop 0")
            e("buffer_load_dwordx4 v7, s[32:35], s38 offen lds")
            e("s_add_u32 s38, s38, s39")
        e("s_mov_b32 exec_hi, -1")
        ck[c] = vm.issue(32 // NP)

    for c in range(K1INIT):
        issue_chunk(c)
    GW = 48
    e("v_lshlrev_b32 v18, 3, v3")
    for c in range(7):
        e(f"global_load_dwordx2 {vr(GW + 2 * c, 2)}, v18, s[14:15] offset:{c * 128}")
    tgw = vm.issue(7)
    e("s_and_b32 s62, s22, 7")
    e("s_lshl_b32 s62, s62, 4")
    e("s_and_b32 s63, s24, 3")
    e("s_lshl_b32 s63, s63, 2")
    e("s_add_u32 s62, s62, s63")
    e("v_add_u32 v19, s62, v4")
    e("v_bfe_u32 v20, v19, 1, 3")
    e("v_lshrrev_b32 v21, 1, v3")
    e("v_xor_b32 v20, v20, v21")
    e("v_lshlrev_b32 v20, 4, v20")
    e("v_lshl_add_u32 v20, v19, 7, v20")
    e("v_and_b32 v21, 1, v3")
    e("v_lshl_add_u32 v20, v21, 3, v20")
    e(f"v_add_u32 v21, {3 * K1_XS}, v20")
    e("v_mov_b32 v22, 0")
    for c in range(7):
        vm.wait(ck[c])
        e("s_barrier")
        slot = c % 5
        e(f"ds_read_b64 v[24:25], v{20 if slot < 3 else 21} offset:{(slot if slot < 3 else slot - 3) * K1_XS}")
        if c == 0:
            for cc in range(K1INIT, 4):
                issue_chunk(cc)
        if c == 1:
            issue_chunk(4)
        if c in (2, 3):
            issue_chunk(c + 3)
        vm.wait(tgw)
        e("s_waitcnt lgkmcnt(0)")
        e(f"v_dot2_f32_bf16 v22, v24, v{GW + 2 * c}, v22")
        e(f"v_dot2_f32_bf16 v22, v25, v{GW + 2 * c + 1}, v22")
    e("s_barrier")
    e("s_cmp_ge_u32 s22, 8")
    e("s_cbranch_scc1 k1_prod_end")
    e("s_cmp_ge_u32 s24, 4")
    e("s_cbranch_scc1 k1_prod_end")
    e("s_nop 1")
    for sh in (1, 2, 4, 8):
        e(f"v_add_f32_dpp v22, v22, v22 row_ror:{sh} row_mask:0xf bank_mask:0xf")
        e("s_nop 1")
    e(f"s_mov_b32 s27, {f32_bits(-math.log2(math.e)):#x}")
    e("v_mul_f32 v22, s27, v22")
    e("v_exp_f32 v22, v22")
    e("s_lshl_b32 s26, s23, 9")
    e(f"s_add_u32 s26, s26, {GATE}")
    e("v_add_f32 v22, 1.0, v22")
    e("v_rcp_f32 v22, v22")
    add64s(32, 18, 26)
    e("v_lshlrev_b32 v19, 2, v19")
    e("global_store_dword v19, v22, s[32:33]")
    e("k1_prod_end:")
    if PREFETCH:
        e(f"s_lshl_b32 s26, s21, {2 if NP == 4 else 3}")
        e("s_add_u32 s26, s26, s24")
        e("s_lshl_b32 s26, s26, 10")
        e("v_lshlrev_b32 v8, 4, v2")
        pc_addr(52, "tab_B64")
        e("s_mov_b32 s54, tab_end-tab_B64")
        e("s_mov_b32 s55, 0x00020000")
        e("buffer_load_dwordx4 v[24:27], v8, s[52:55], s26 offen")
        pc_addr(56, "k2_kernel")
        e("s_mov_b32 s58, k3_kernel-k2_kernel")
        e("s_mov_b32 s59, 0x00020000")
        e("buffer_load_dwordx4 v[28:31], v8, s[56:59], s26 offen")
    prof_end(0)
    e("s_endpgm")

    e("k1_consumer:")
    WO = 160
    e("s_waitcnt lgkmcnt(0)")
    WJ = 104
    e("s_lshl_b32 s44, s2, 2")
    e("s_add_u32 s44, s44, s24")
    e("s_and_b32 s45, s44, 7")
    e("s_lshr_b32 s46, s44, 3")
    e("s_and_b32 s46, s46, 3")
    e("s_lshr_b32 s44, s44, 5")
    e("s_lshl_b32 s44, s44, 1")
    e("s_lshl_b32 s46, s46, 6")
    e("v_add_u32 v16, s46, v2")
    e("v_lshlrev_b32 v17, 13, v16")
    e("v_cmp_gt_u32 vcc, 0xe1, v16")
    e("s_mov_b64 s[64:65], vcc")
    e("v_lshlrev_b32 v16, 1, v16")
    e("s_lshl_b32 s46, s45, 8")
    e("s_add_u32 s46, s46, s44")
    e("s_mul_i32 s46, s46, 450")
    e("s_mov_b32 s48, s6")
    e("s_mov_b32 s49, s7")
    e("s_mov_b32 s50, 921600")
    e("s_mov_b32 s51, 0x00020000")
    e("s_mov_b32 s52, s12")
    e("s_mov_b32 s53, s13")
    e("s_mov_b32 s54, 921600")
    e("s_mov_b32 s55, 0x00020000")
    e("s_lshl_b32 s45, s45, 10")
    e("s_lshl_b32 s44, s44, 4")
    e("s_add_u32 s45, s45, s44")
    e(f"s_add_u32 s45, s45, {WT}")
    add64s(60, 18, 45)
    e("s_mov_b64 exec, s[64:65]")
    for ee in range(2):
        for r in range(4):
            e(f"s_add_u32 s47, s46, {(64 * r + ee) * 450}")
            e(f"buffer_load_ushort v{WJ + ee * 4 + r}, v16, s[48:51], s47 offen")
            e(f"buffer_load_ushort v{WJ + 8 + ee * 4 + r}, v16, s[52:55], s47 offen")
    e("s_mov_b64 exec, -1")
    e("s_lshl_b32 s26, s2, 2")
    e("s_add_u32 s26, s26, s24")
    e("s_cmp_ge_u32 s26, 392")
    e("s_cbranch_scc1 k1_nowo")
    e("v_mul_u32_u24 v6, 8*896, v4")
    e("v_lshl_add_u32 v6, v3, 1, v6")
    e("v_add_u32 v7, 4*896, v6")
    e("s_mul_i32 s27, s26, 4682")
    e("s_lshr_b32 s27, s27, 16")
    e("s_mul_i32 s28, s27, 14")
    e("s_sub_u32 s28, s26, s28")
    e(f"s_mul_i32 s28, s28, {32 * 896}")
    e("s_lshl_b32 s27, s27, 5")
    e("s_add_u32 s28, s28, s27")
    add64s(30, 10, 28)
    for j in range(8):
        e(f"global_load_ushort v{WO + j}, v{6 + (j >> 2)}, s[30:31] offset:{(j & 3) * 896}")
    e("k1_nowo:")
    e("v_and_b32 v8, 1, v4")
    e("v_lshl_add_u32 v9, v4, 1, v8")
    e("v_xor_b32 v8, 1, v8")
    e("v_lshl_add_u32 v10, v4, 1, v8")
    e("v_mul_u32_u24 v9, 896, v9")
    e("v_mul_u32_u24 v10, 896, v10")
    e("v_lshrrev_b32 v8, 2, v3")
    e("v_mul_u32_u24 v8, 224, v8")
    e("v_and_b32 v11, 3, v3")
    e("v_lshl_add_u32 v8, v11, 3, v8")
    e(f"v_add_u32 v8, {K1_BOFF}, v8")
    e("v_add_u32 v20, v9, v8")
    e("v_add_u32 v21, v10, v8")
    e("v_lshrrev_b32 v8, 1, v3")
    e("v_xor_b32 v8, v8, v4")
    e("v_lshlrev_b32 v11, 7, v3")
    e("s_lshl_b32 s43, s24, 12")
    e("v_add_u32 v11, s43, v11")
    e("v_lshl_add_u32 v22, v8, 4, v11")
    e("v_xor_b32 v23, 64, v22")
    e("v_mov_b32 v9, v20")
    e("v_mov_b32 v10, v21")
    e("v_mov_b32 v12, v22")
    e("v_mov_b32 v13, v23")
    for r in range(56):
        e(f"v_mov_b32 v{ACC + r}, 0")
    e("s_mov_b32 s44, 0")
    e("s_mov_b32 s45, 7")
    e("s_mul_i32 s43, s24, 9216")
    e(f"s_add_u32 s43, s43, {2 * K1_XS}")

    def mainloop(transposed, lab):
        lg = Cnt("lgkmcnt", 15)
        tk = {}

        def rdA(kk, areg):
            for t in range(2):
                e(f"ds_read_b128 {vr(AF + (kk * 2 + t) * 4, 4)}, v{areg} offset:{t * 2048}")
                tk[("A", kk, t)] = lg.issue()

        def rdB(kk, jn, b0, b1):
            off = kk * 7168 + jn * 32
            b = BF + kk * 28 + jn * 4
            e(f"ds_read_b64_tr_b16 {vr(b, 2)}, v{b0} offset:{off}")
            e(f"ds_read_b64_tr_b16 {vr(b + 2, 2)}, v{b1} offset:{off}")
            tk[("B", kk, jn)] = lg.issue(2)

        def half(kk):
            for jn in range(7):
                lg.wait(max(tk[("A", kk, 0)], tk[("A", kk, 1)], tk[("B", kk, jn)]))
                for t in range(2):
                    acc = vr(ACC + (t * 7 + jn) * 4, 4)
                    xf = vr(AF + (kk * 2 + t) * 4, 4)
                    bf = vr(BF + kk * 28 + jn * 4, 4)
                    if transposed:
                        e(f"v_mfma_f32_16x16x32_bf16 {acc}, {bf}, {xf}, {acc}")
                    else:
                        e(f"v_mfma_f32_16x16x32_bf16 {acc}, {xf}, {bf}, {acc}")
                if kk == 0:
                    if jn == 0:
                        rdA(1, 13)
                    rdB(1, jn, 9, 10)
                else:
                    if jn == 0:
                        rdA(0, 12)
                    rdB(0, jn, 9, 10)

        e("s_barrier")
        stamp()
        rdA(0, 12)
        for jn in range(7):
            rdB(0, jn, 9, 10)
        e(f"{lab}:")
        lg.done = lg.n - 16
        half(0)
        e("s_add_u32 s44, s44, 1")
        e("s_cmp_eq_u32 s44, 5")
        e("s_cmov_b32 s44, 0")
        e(f"s_mul_i32 s46, s44, {K1_XS}")
        e(f"s_mul_i32 s47, s44, {K1_BS}")
        e("v_add_u32 v12, s46, v22")
        e("v_add_u32 v13, s46, v23")
        e("v_add_u32 v9, s47, v20")
        e("v_add_u32 v10, s47, v21")
        e("s_barrier")
        half(1)
        e("s_sub_u32 s45, s45, 1")
        e("s_cmp_lg_u32 s45, 0")
        e(f"s_cbranch_scc1 {lab}")
        e("s_waitcnt lgkmcnt(0)")
        e("s_nop 3")

    def out_base(region_sreg):
        e("s_and_b32 s62, s22, 3")
        e("s_lshl_b32 s62, s62, 19")
        e(f"s_add_u32 s{region_sreg}, s{region_sreg}, s62")
        e("s_lshl_b32 s62, s23, 2")
        e("s_add_u32 s62, s62, s24")
        e("s_lshl_b32 s62, s62, 11")
        e(f"s_add_u32 s{region_sreg}, s{region_sreg}, s62")
        add64s(62, 18, region_sreg)
        e("v_lshlrev_b32 v19, 4, v2")

    def out_store(fix):
        for hl in range(4):
            if hl:
                e("v_add_u32 v19, 0x20000, v19")
            for ks in range(2):
                n = hl * 2 + ks
                e(f"s_waitcnt lgkmcnt({7 - n})")
                if fix and ks == 1:
                    e("s_mov_b32 exec_lo, 0")
                    e(f"v_mov_b32 v{RB + n * 4 + 2}, 0")
                    e(f"v_mov_b32 v{RB + n * 4 + 3}, 0")
                    e("s_mov_b32 exec_lo, -1")
                e(f"global_store_dwordx4 v19, {vr(RB + n * 4, 4)}, s[62:63] offset:{ks * 1024}")

    e("s_waitcnt vmcnt(0)")
    for r in range(8):
        e(f"v_lshl_or_b32 v{WJ + r}, v{WJ + 8 + r}, 16, v{WJ + r}")
    e("s_mov_b64 exec, s[64:65]")
    for ee in range(2):
        e(f"global_store_dwordx4 v17, {vr(WJ + 4 * ee, 4)}, s[60:61] offset:{16 * ee}{WTPOL}")
    e("s_mov_b64 exec, -1")
    e("s_cmp_ge_u32 s26, 392")
    e("s_cbranch_scc1 k1_nowo2")
    e("s_lshl_b32 s27, s26, 10")
    e(f"s_add_u32 s27, s27, {WOT}")
    add64s(30, 18, 27)
    e("v_lshlrev_b32 v6, 4, v2")
    for j in range(4):
        e(f"v_lshl_or_b32 v{WO + j}, v{WO + 1 + 2 * j}, 16, v{WO + 2 * j}")
    e(f"global_store_dwordx4 v6, {vr(WO, 4)}, s[30:31]{WTPOL}")
    e("k1_nowo2:")
    e("s_nop 1")
    e("s_cmp_ge_u32 s22, 8")
    e("s_cbranch_scc1 k1_normal")
    sv = _st[0]
    mainloop(True, "k1_loop_t")
    stamp()
    e("s_cmp_ge_u32 s22, 4")
    csel(64, KF, QF)
    e("s_cbranch_scc1 k1_noscale")
    e(f"s_mov_b32 s66, {f32_bits(QSCALE):#x}")
    e(f"s_mov_b32 s67, {f32_bits(QSCALE):#x}")
    for r in range(0, 56, 2):
        e(f"v_pk_mul_f32 {vr(ACC + r, 2)}, {vr(ACC + r, 2)}, s[66:67]")
    e("k1_noscale:")
    e("v_mul_u32_u24 v5, 240, v3")
    e("v_lshl_add_u32 v5, v4, 3, v5")
    e("v_add_u32 v5, s43, v5")
    for jn in range(7):
        for t in range(2):
            a = ACC + (t * 7 + jn) * 4
            e(f"v_cvt_pk_bf16_f32 v{a}, v{a}, v{a + 1}")
            e(f"v_cvt_pk_bf16_f32 v{a + 1}, v{a + 2}, v{a + 3}")
            e(f"ds_write_b64 v5, {vr(a, 2)} offset:{jn * 32 + t * 3840}")
    out_base(64)
    e("v_and_b32 v18, 31, v2")
    e("v_mul_u32_u24 v18, 240, v18")
    e("v_lshrrev_b32 v6, 5, v2")
    e("v_lshl_add_u32 v18, v6, 4, v18")
    e("v_add_u32 v18, s43, v18")
    e("s_waitcnt lgkmcnt(0)")
    stamp()
    for hl in range(4):
        for ks in range(2):
            o8 = 7 * hl + 4 * ks
            e(f"ds_read2_b64 {vr(RB + (hl * 2 + ks) * 4, 4)}, v18 offset0:{o8} offset1:{o8 + 1}")
    out_store(True)
    stamp()
    if INSTR: e("s_waitcnt vmcnt(0)")
    stamp()
    stamp_flush(69)
    prof_end(0)
    e("s_endpgm")
    _st[0] = sv
    e("k1_normal:")
    mainloop(False, "k1_loop_n")
    e("s_cmp_ge_u32 s22, 12")
    e("s_cbranch_scc1 k1_f")
    e(f"s_mov_b32 s64, {VF}")
    e("v_mul_u32_u24 v5, 80, v3")
    e("v_lshl_add_u32 v5, v4, 3, v5")
    e("v_add_u32 v5, s43, v5")
    for jn in range(7):
        for t in range(2):
            a = ACC + (t * 7 + jn) * 4
            e(f"v_cvt_pk_bf16_f32 v{a}, v{a}, v{a + 1}")
            e(f"v_cvt_pk_bf16_f32 v{a + 1}, v{a + 2}, v{a + 3}")
            e(f"ds_write_b64 v5, {vr(a, 2)} offset:{jn * 1280 + t * 32}")
    out_base(64)
    e("v_and_b32 v18, 31, v2")
    e("v_mul_u32_u24 v18, 80, v18")
    e("v_lshrrev_b32 v6, 5, v2")
    e("v_lshl_add_u32 v18, v6, 4, v18")
    e("v_add_u32 v18, s43, v18")
    for r in range(32):
        e(f"v_mov_b32 v{RB + r}, 0x3f803f80")
    e("s_waitcnt lgkmcnt(0)")
    e("s_mov_b32 exec_lo, 0x0fffffff")
    e("s_mov_b32 exec_hi, 0x0fffffff")
    for hl in range(4):
        for ks in range(2):
            e(f"ds_read_b128 {vr(RB + (hl * 2 + ks) * 4, 4)}, v18 offset:{hl * 28 * 80 + ks * 32}")
    e("s_mov_b64 exec, -1")
    out_store(False)
    prof_end(0)
    e("s_endpgm")
    e("k1_f:")
    e("v_lshlrev_b32 v5, 6, v3")
    e("v_lshl_add_u32 v5, v4, 3, v5")
    e("v_add_u32 v5, s43, v5")
    for jn in range(7):
        for t in range(2):
            a = ACC + (t * 7 + jn) * 4
            e(f"v_cvt_pk_bf16_f32 v{a}, v{a}, v{a + 1}")
            e(f"v_cvt_pk_bf16_f32 v{a + 1}, v{a + 2}, v{a + 3}")
            e(f"ds_write_b64 v5, {vr(a, 2)} offset:{jn * 1024 + t * 32}")
    e("s_sub_u32 s64, s22, 12")
    e(f"s_mul_i32 s64, s64, {112 * 4096}")
    e(f"s_add_u32 s64, s64, {YT}")
    e("s_lshl_b32 s62, s23, 8")
    e("s_add_u32 s64, s64, s62")
    e("s_lshl_b32 s62, s24, 6")
    e("s_add_u32 s64, s64, s62")
    add64s(62, 18, 64)
    e("v_lshlrev_b32 v18, 4, v2")
    e("v_add_u32 v18, s43, v18")
    e("v_lshrrev_b32 v19, 2, v2")
    e("v_lshlrev_b32 v19, 12, v19")
    e("v_and_b32 v6, 3, v2")
    e("v_lshl_add_u32 v19, v6, 4, v19")
    e("s_waitcnt lgkmcnt(0)")
    for n in range(7):
        e(f"ds_read_b128 {vr(RB + n * 4, 4)}, v18 offset:{n * 1024}")
    for n in range(7):
        if n:
            e("v_add_u32 v19, 0x10000, v19")
        e(f"s_waitcnt lgkmcnt({6 - n})")
        e(f"global_store_dwordx4 v19, {vr(RB + n * 4, 4)}, s[62:63]")
    prof_end(0)
    e("k1_end:")
    e("s_endpgm")
    e("k1_code_end:")
    return descriptor(name, 168)


def tables():
    T = []
    T.append('.section .rodata,"a"')
    for i in range(448):
        T.append(f".set TC_{i}, {bf16_bits(math.cos(2 * math.pi * i / 448)):#x}")
    sc = 2.0 / (2048 * 448)
    for i in range(448):
        T.append(f".set TG_{i}, {bf16_bits(sc * math.cos(2 * math.pi * i / 448)):#x}")
    T.append(""".altmacro
.macro emitc a
 .short TC_\\a
.endm
.macro emitg a
 .short TG_\\a
.endm
.macro emitgh a
 .short TG_\\a - 0x80
.endm
.p2align 8
tab_F:
.set dd, 0
.rept 448
 .set aa, 0
 .rept 225
  emitc %aa
  .set aa, (aa + dd) % 448
 .endr
 .set aa, (dd + 112) % 448
 .rept 223
  emitc %aa
  .set aa, (aa + dd) % 448
 .endr
 .set dd, dd+1
.endr
.p2align 8
tab_G:
.set ct, 0
.rept 28
 .set ks, 0
 .rept 14
  .set ln, 0
  .rept 64
   .set dc, 16*ct + (ln & 15)
   .set cc, 32*ks + 8*(ln >> 4)
   .rept 8
    .if cc == 0
     emitgh 0
    .elseif cc == 224
     emitgh %((224*dc) % 448)
    .elseif cc < 224
     emitg %((cc*dc) % 448)
    .else
     emitg %(((cc-224)*dc + 112) % 448)
    .endif
    .set cc, cc+1
   .endr
   .set ln, ln+1
  .endr
  .set ks, ks+1
 .endr
 .set ct, ct+1
.endr
.noaltmacro""")
    def emit_u16(vals):
        for i in range(0, len(vals), 16):
            w = [vals[j] | (vals[j + 1] << 16) for j in range(i, min(i + 16, len(vals)), 2)]
            T.append(".long " + ",".join(f"{x:#x}" for x in w))

    def emit_u32(vals):
        for i in range(0, len(vals), 8):
            T.append(".long " + ",".join(f"{x:#x}" for x in vals[i:i + 8]))

    T.append(".p2align 8\ntab_B64:")
    v = []
    for wv in range(4):
        for ty in range(3):
            for ks in range(2):
                for l in range(64):
                    n = 16 * wv + (l & 15)
                    for j in range(8):
                        k = 32 * ks + 8 * (l >> 4) + j
                        ang = 2 * math.pi * ((n * k) % 64) / 64
                        val = math.cos(ang) if ty == 0 else (math.sin(ang) if ty == 1 else -math.sin(ang))
                        if abs(val) < 1e-9: val = 0.0
                        v.append(bf16_bits(val))
    emit_u16(v)
    T.append(".p2align 8\ntab_A32:")
    v = []
    for ty in range(2):
        for mt in range(2):
            for l in range(64):
                m = 16 * mt + (l & 15)
                g = l >> 4
                for j in range(8):
                    n2 = 4 * g + j if j < 4 else 16 + 4 * g + j - 4
                    ang = 2 * math.pi * ((m * n2) % 32) / 32
                    val = math.cos(ang) if ty == 0 else math.sin(ang)
                    if abs(val) < 1e-9: val = 0.0
                    v.append(bf16_bits(val))
    emit_u16(v)
    T.append(".p2align 8\ntab_TW:")
    v = []
    for wv in range(4):
        for mt in range(2):
            for cs in range(2):
                for l in range(64):
                    f1 = 16 * wv + (l & 15)
                    g = l >> 4
                    for r in range(4):
                        n2 = 16 * mt + 4 * g + r
                        ang = 2 * math.pi * ((n2 * f1) % 2048) / 2048
                        v.append(f32_bits(math.cos(ang) if cs == 0 else math.sin(ang)))
    emit_u32(v)
    T.append("tab_end:")
    return "\n".join(T)


def main():
    which = sys.argv[1] if len(sys.argv) > 1 else "123"
    launches = []
    descs = []
    if "1" in which:
        launches.append(f"; @launch kernel=k1_kernel grid=(256,1,1) block=({256 + 64 * NP},1,1) lds=153600")
    if "2" in which:
        launches.append("; @launch kernel=k2_kernel grid=(256,1,1) block=(512,1,1) lds=57600")
    if "3" in which:
        launches.append("; @launch kernel=k3_kernel grid=(224,1,1) block=(1024,1,1) lds=131072")
    print("\n".join(launches))
    print('.amdgcn_target "amdgcn-amd-amdhsa--gfx950"\n.text')
    if "1" in which:
        descs.append(k1())
    if "2" in which:
        from gen_k2 import k2
        descs.append(k2())
    if "3" in which:
        from gen_k3 import k3
        descs.append(k3())
    print("\n".join(L))
    print(tables())
    print("\n".join(descs))


if __name__ == "__main__":
    import gen
    gen.main()
```

```python
import math, struct, sys
import numpy as np

QF = 0x000000
KF = 0x200000
VF = 0x400000
YT = 0x600000
WT = 0x800000
WOT = 0xA00000
GATE = 0xA80000
OB = 0xB00000
UT = 0xD00000

L = []


def e(s=""):
    L.append("  " + s if s and not s.endswith(":") else s)


def bf16_bits(x):
    u = struct.unpack("<I", struct.pack("<f", float(x)))[0]
    u = (u + 0x7FFF + ((u >> 16) & 1)) >> 16
    return u & 0xFFFF


def f32_bits(x):
    return struct.unpack("<I", struct.pack("<f", float(x)))[0]


def vr(a, n):
    return f"v[{a}:{a + n - 1}]" if n > 1 else f"v{a}"


def header(name):
    e(f".globl {name}")
    e(".p2align 8")
    e(f".type {name},@function")
    e(f"{name}:")


def descriptor(name, vgpr, sgpr=96, accum=None):
    if INSTR:
        pass
    if accum is None:
        accum = (vgpr + 3) // 4 * 4
    return f""".p2align 6
.amdhsa_kernel {name}
  .amdhsa_next_free_vgpr {vgpr}
  .amdhsa_next_free_sgpr {sgpr}
  .amdhsa_accum_offset {accum}
  .amdhsa_group_segment_fixed_size 0
  .amdhsa_kernarg_size 80
  .amdhsa_user_sgpr_count 2
  .amdhsa_user_sgpr_kernarg_segment_ptr 1
  .amdhsa_system_sgpr_workgroup_id_x 1
.end_amdhsa_kernel"""


def add64(dst, src, imm):
    e(f"s_add_u32 s{dst}, s{src}, {imm}")
    e(f"s_addc_u32 s{dst + 1}, s{src + 1}, 0")


def add64s(dst, src, sreg):
    e(f"s_add_u32 s{dst}, s{src}, s{sreg}")
    e(f"s_addc_u32 s{dst + 1}, s{src + 1}, 0")


def csel(dst, tv, fv):
    e(f"s_mov_b32 s{dst}, {fv}")
    e(f"s_cmov_b32 s{dst}, {tv}")


def pc_addr(dst, label):
    e(f"s_getpc_b64 s[{dst}:{dst + 1}]")
    e(f"s_add_u32 s{dst}, s{dst}, {label}@rel32@lo+4")
    e(f"s_addc_u32 s{dst + 1}, s{dst + 1}, {label}@rel32@hi+12")


import os
INSTR = os.environ.get("INSTR", "")
K1PF = int(os.environ.get("K1PF", "0"))
PREFETCH = int(os.environ.get("PREFETCH", "1"))
SELFPF = int(os.environ.get("SELFPF", "0"))
FMAP = int(os.environ.get("FMAP", "1"))
NP = int(os.environ.get("NP", "4"))
K1INIT = int(os.environ.get("K1INIT", "3"))
WTPOL = os.environ.get("WTPOL", "")
_st = [0]


def stamp():
    if INSTR:
        n = _st[0]
        e("s_memtime s[90:91]")
        e("s_waitcnt lgkmcnt(0)")
        e(f"s_mov_b32 s{70 + n}, s90")
        _st[0] += 1


def stamp_flush(wavereg, nslots=16):
    if INSTR:
        n = _st[0]
        e("s_load_dwordx2 s[90:91], s[0:1], 64")
        e("s_waitcnt lgkmcnt(0)")
        e(f"s_cmp_lg_u32 s{wavereg}, 0")
        e(f"s_cbranch_scc1 stampskip{len(L)}")
        lab = f"stampskip{len(L) - 1}"
        e("s_and_b32 s92, s2, 63")
        e("s_cmp_lg_u32 s92, 5")
        e(f"s_cbranch_scc1 {lab}")
        e("s_lshr_b32 s92, s2, 6")
        e("s_lshl_b32 s92, s92, 6")
        e("v_mov_b32 v1, s92")
        for i in range(n):
            e(f"s_sub_u32 s88, s{70 + i}, s70")
            e("v_mov_b32 v2, s88")
            e(f"global_store_dword v1, v2, s[90:91] offset:{4 * i}")
        e(f"{lab}:")


PROF = 0xF00000


PROFV = 164


def prof_start():
    if INSTR:
        e("s_memrealtime s[94:95]")
        e("v_readfirstlane_b32 s93, v0")


def prof_end(kidx):
    if INSTR:
        e("s_mov_b64 exec, -1")
        e("s_waitcnt vmcnt(0) lgkmcnt(0)")
        e("s_memrealtime s[90:91]")
        e("s_waitcnt lgkmcnt(0)")
        e("v_mov_b32 v2, s94")
        e("v_mov_b32 v3, s90")
        e("s_lshl_b32 s92, s2, 7")
        e(f"s_add_u32 s92, s92, {PROF + kidx * 65536}")
        e("s_lshr_b32 s89, s93, 6")
        e("s_lshl_b32 s89, s89, 3")
        e("s_add_u32 s92, s92, s89")
        e("v_mov_b32 v4, s92")
        e("global_store_dwordx2 v4, v[2:3], s[18:19]")


class Cnt:
    def __init__(self, name, maxv):
        self.name, self.maxv, self.n = name, maxv, 0
        self.done = 0

    def issue(self, k=1):
        self.n += k
        return self.n

    def wait(self, ticket):
        if ticket <= self.done:
            return
        allowed = self.n - ticket
        if allowed > self.maxv:
            allowed = self.maxv
        e(f"s_waitcnt {self.name}({allowed})")
        self.done = self.n - allowed

    def reset(self):
        self.n = 0
        self.done = 0


QSCALE = (28.0 ** -0.5) * math.log2(math.e)


K1_XS = 16384
K1_BS = 14336
K1_BOFF = 5 * K1_XS
K1_LDS = K1_BOFF + 5 * K1_BS


def k1():
    name = "k1_kernel"
    header(name)
    AF = 32
    ACC = 48
    BF = 104
    RB = 104
    e("s_cmp_ge_u32 s2, 256")
    e("s_cbranch_scc1 k1_end")
    stamp()
    prof_start()
    e("s_load_dwordx4 s[4:7], s[0:1], 0")
    e("s_load_dwordx2 s[12:13], s[0:1], 16")
    e("s_load_dwordx4 s[8:11], s[0:1], 32")
    e("s_load_dwordx2 s[18:19], s[0:1], 72")
    e("s_load_dwordx2 s[14:15], s[0:1], 48")
    e("s_and_b32 s20, s2, 7")
    e("s_lshr_b32 s21, s2, 3")
    e("s_lshr_b32 s22, s20, 1")
    e("s_and_b32 s23, s21, 3")
    e("s_lshl_b32 s23, s23, 2")
    e("s_add_u32 s22, s22, s23")
    e("s_and_b32 s23, s20, 1")
    e("s_lshl_b32 s23, s23, 3")
    e("s_lshr_b32 s24, s21, 2")
    e("s_add_u32 s23, s23, s24")
    if FMAP:
        e("s_and_b32 s25, s23, 3")
        e("s_lshr_b32 s26, s23, 3")
        e("s_lshl_b32 s26, s26, 2")
        e("s_or_b32 s25, s25, s26")
        e("s_bfe_u32 s26, s23, 0x10002")
        e("s_lshl_b32 s26, s26, 3")
        e("s_or_b32 s25, s25, s26")
        e("s_cmp_ge_u32 s22, 12")
        e("s_cselect_b32 s23, s25, s23")
    e("v_lshrrev_b32 v1, 6, v0")
    e("v_and_b32 v2, 63, v0")
    e("v_readfirstlane_b32 s69, v1")
    e("v_and_b32 v3, 15, v2")
    e("v_lshrrev_b32 v4, 4, v2")
    e("s_mov_b32 s24, s69")
    if SELFPF:
        pc_addr(84, "k1_kernel")
        e("s_mov_b32 s86, k1_code_end-k1_kernel")
        e("s_mov_b32 s87, 0x00020000")
        e("v_lshlrev_b32 v8, 4, v0")
        e("buffer_load_dwordx4 v[164:167], v8, s[84:87], 0 offen")
    e("s_cmp_lt_u32 s69, 4")
    e("s_cbranch_scc1 k1_consumer")
    e("s_sub_u32 s24, s69, 4")
    e("s_lshl_b32 s25, s23, 7")
    e("s_lshr_b32 s26, s23, 2")
    e("s_and_b32 s26, s26, 1")
    e("s_lshl_b32 s26, s26, 10")
    e("s_and_b32 s27, s23, 3")
    e("s_lshl_b32 s27, s27, 8")
    e("s_add_u32 s26, s26, s27")
    e("s_lshr_b32 s27, s23, 3")
    e("s_lshl_b32 s27, s27, 4")
    e("s_add_u32 s26, s26, s27")
    e("s_cmp_ge_u32 s22, 12")
    e("s_cselect_b32 s25, s26, s25")
    csel(26, 896, 8 * 896)
    csel(27, 32 * 896, 896)
    csel(34, 401408, 1204224)
    csel(36, 896, 2688)
    e("s_cselect_b32 s37, 12, 0")
    e("s_mul_i32 s25, s25, 896")
    e("s_mul_i32 s28, s24, s26")
    e("s_add_u32 s25, s25, s28")
    e(f"s_lshl_b32 s26, s26, {2 if NP == 4 else 3}")
    e("v_lshrrev_b32 v5, 3, v2")
    e("v_mul_lo_u32 v5, v5, s27")
    e("s_and_b32 s28, s24, 1")
    e("s_lshl_b32 s28, s28, 2")
    e("v_add_u32 v6, s28, v4")
    e("v_and_b32 v7, 7, v2")
    e("v_xor_b32 v6, v6, v7")
    e("v_lshl_add_u32 v5, v6, 4, v5")
    e("s_mov_b32 s35, 0x00020000")
    e("s_sub_u32 s37, s22, s37")
    e("s_mul_i32 s37, s37, 224")
    e("s_mov_b32 s58, 1835008")
    e("s_mov_b32 s59, 0x00020000")
    e("v_mul_u32_u24 v7, 147, v2")
    e("v_lshrrev_b32 v7, 11, v7")
    e("v_mul_u32_u24 v8, 14, v7")
    e("v_sub_u32 v8, v2, v8")
    e("v_mul_lo_u32 v7, v7, s36")
    e("v_lshl_add_u32 v7, v8, 4, v7")
    e("s_lshr_b32 s38, s24, 1")
    e("s_and_b32 s38, s38, 1")
    e("s_xor_b32 s38, s38, s24")
    e("s_mul_i32 s38, s38, s36")
    e("s_lshl_b32 s38, s38, 2")
    e("s_add_u32 s38, s38, s37")
    e(f"s_lshl_b32 s39, s36, {4 if NP == 4 else 5}")
    e("s_mul_i32 s40, s24, 896")
    e(f"s_add_u32 s40, s40, {K1_BOFF}")
    e("s_lshl_b32 s41, s24, 10")
    pc_addr(28, "tab_F")
    e("s_waitcnt lgkmcnt(0)")
    e("s_cmp_ge_u32 s22, 12")
    e("s_cselect_b32 s32, s28, s8")
    e("s_cselect_b32 s33, s29, s9")
    e("s_mov_b32 s56, s4")
    e("s_mov_b32 s57, s5")
    vm = Cnt("vmcnt", 63)
    ck = {}
    if SELFPF: vm.issue(1)

    def issue_chunk(c):
        slot = c % 5
        for ee in range(16 // NP):
            e(f"s_add_u32 m0, s41, {slot * K1_XS + ee * NP * 1024}")
            e(f"s_add_u32 s42, s25, {c * 128}" if ee == 0 else "s_add_u32 s42, s42, s26")
            e("buffer_load_dwordx4 v5, s[56:59], s42 offen lds")
        e("s_mov_b32 exec_hi, 0x00ffffff")
        for ee in range(16 // NP):
            e(f"s_add_u32 m0, s40, {slot * K1_BS + ee * NP * 896}")
            e("s_nop 0")
            e("buffer_load_dwordx4 v7, s[32:35], s38 offen lds")
            e("s_add_u32 s38, s38, s39")
        e("s_mov_b32 exec_hi, -1")
        ck[c] = vm.issue(32 // NP)

    for c in range(K1INIT):
        issue_chunk(c)
    GW = 48
    e("v_lshlrev_b32 v18, 3, v3")
    for c in range(7):
        e(f"global_load_dwordx2 {vr(GW + 2 * c, 2)}, v18, s[14:15] offset:{c * 128}")
    tgw = vm.issue(7)
    e("s_and_b32 s62, s22, 7")
    e("s_lshl_b32 s62, s62, 4")
    e("s_and_b32 s63, s24, 3")
    e("s_lshl_b32 s63, s63, 2")
    e("s_add_u32 s62, s62, s63")
    e("v_add_u32 v19, s62, v4")
    e("v_bfe_u32 v20, v19, 1, 3")
    e("v_lshrrev_b32 v21, 1, v3")
    e("v_xor_b32 v20, v20, v21")
    e("v_lshlrev_b32 v20, 4, v20")
    e("v_lshl_add_u32 v20, v19, 7, v20")
    e("v_and_b32 v21, 1, v3")
    e("v_lshl_add_u32 v20, v21, 3, v20")
    e(f"v_add_u32 v21, {3 * K1_XS}, v20")
    e("v_mov_b32 v22, 0")
    for c in range(7):
        vm.wait(ck[c])
        e("s_barrier")
        slot = c % 5
        e(f"ds_read_b64 v[24:25], v{20 if slot < 3 else 21} offset:{(slot if slot < 3 else slot - 3) * K1_XS}")
        if c == 0:
            for cc in range(K1INIT, 4):
                issue_chunk(cc)
        if c == 1:
            issue_chunk(4)
        if c in (2, 3):
            issue_chunk(c + 3)
        vm.wait(tgw)
        e("s_waitcnt lgkmcnt(0)")
        e(f"v_dot2_f32_bf16 v22, v24, v{GW + 2 * c}, v22")
        e(f"v_dot2_f32_bf16 v22, v25, v{GW + 2 * c + 1}, v22")
    e("s_barrier")
    e("s_cmp_ge_u32 s22, 8")
    e("s_cbranch_scc1 k1_prod_end")
    e("s_cmp_ge_u32 s24, 4")
    e("s_cbranch_scc1 k1_prod_end")
    e("s_nop 1")
    for sh in (1, 2, 4, 8):
        e(f"v_add_f32_dpp v22, v22, v22 row_ror:{sh} row_mask:0xf bank_mask:0xf")
        e("s_nop 1")
    e(f"s_mov_b32 s27, {f32_bits(-math.log2(math.e)):#x}")
    e("v_mul_f32 v22, s27, v22")
    e("v_exp_f32 v22, v22")
    e("s_lshl_b32 s26, s23, 9")
    e(f"s_add_u32 s26, s26, {GATE}")
    e("v_add_f32 v22, 1.0, v22")
    e("v_rcp_f32 v22, v22")
    add64s(32, 18, 26)
    e("v_lshlrev_b32 v19, 2, v19")
    e("global_store_dword v19, v22, s[32:33]")
    e("k1_prod_end:")
    if PREFETCH:
        e(f"s_lshl_b32 s26, s21, {2 if NP == 4 else 3}")
        e("s_add_u32 s26, s26, s24")
        e("s_lshl_b32 s26, s26, 10")
        e("v_lshlrev_b32 v8, 4, v2")
        pc_addr(52, "tab_B64")
        e("s_mov_b32 s54, tab_end-tab_B64")
        e("s_mov_b32 s55, 0x00020000")
        e("buffer_load_dwordx4 v[24:27], v8, s[52:55], s26 offen")
        pc_addr(56, "k2_kernel")
        e("s_mov_b32 s58, k3_kernel-k2_kernel")
        e("s_mov_b32 s59, 0x00020000")
        e("buffer_load_dwordx4 v[28:31], v8, s[56:59], s26 offen")
    prof_end(0)
    e("s_endpgm")

    e("k1_consumer:")
    WO = 160
    e("s_waitcnt lgkmcnt(0)")
    WJ = 104
    e("s_lshl_b32 s44, s2, 2")
    e("s_add_u32 s44, s44, s24")
    e("s_and_b32 s45, s44, 7")
    e("s_lshr_b32 s46, s44, 3")
    e("s_and_b32 s46, s46, 3")
    e("s_lshr_b32 s44, s44, 5")
    e("s_lshl_b32 s44, s44, 1")
    e("s_lshl_b32 s46, s46, 6")
    e("v_add_u32 v16, s46, v2")
    e("v_lshlrev_b32 v17, 13, v16")
    e("v_cmp_gt_u32 vcc, 0xe1, v16")
    e("s_mov_b64 s[64:65], vcc")
    e("v_lshlrev_b32 v16, 1, v16")
    e("s_lshl_b32 s46, s45, 8")
    e("s_add_u32 s46, s46, s44")
    e("s_mul_i32 s46, s46, 450")
    e("s_mov_b32 s48, s6")
    e("s_mov_b32 s49, s7")
    e("s_mov_b32 s50, 921600")
    e("s_mov_b32 s51, 0x00020000")
    e("s_mov_b32 s52, s12")
    e("s_mov_b32 s53, s13")
    e("s_mov_b32 s54, 921600")
    e("s_mov_b32 s55, 0x00020000")
    e("s_lshl_b32 s45, s45, 10")
    e("s_lshl_b32 s44, s44, 4")
    e("s_add_u32 s45, s45, s44")
    e(f"s_add_u32 s45, s45, {WT}")
    add64s(60, 18, 45)
    e("s_mov_b64 exec, s[64:65]")
    for ee in range(2):
        for r in range(4):
            e(f"s_add_u32 s47, s46, {(64 * r + ee) * 450}")
            e(f"buffer_load_ushort v{WJ + ee * 4 + r}, v16, s[48:51], s47 offen")
            e(f"buffer_load_ushort v{WJ + 8 + ee * 4 + r}, v16, s[52:55], s47 offen")
    e("s_mov_b64 exec, -1")
    e("s_lshr_b32 s26, s21, 2")
    e("s_mul_i32 s26, s26, 3")
    e("s_and_b32 s27, s21, 3")
    e("s_add_u32 s26, s26, s27")
    e("s_lshl_b32 s26, s26, 3")
    e("s_add_u32 s26, s26, s20")
    e("s_lshl_b32 s26, s26, 2")
    e("s_add_u32 s26, s26, s24")
    e("s_cmp_ge_u32 s22, 12")
    e("s_cmov_b32 s26, 1000")
    e("s_cmp_ge_u32 s26, 392")
    e("s_cbranch_scc1 k1_nowo")
    e("v_mul_u32_u24 v6, 8*896, v4")
    e("v_lshl_add_u32 v6, v3, 1, v6")
    e("v_add_u32 v7, 4*896, v6")
    e("s_mul_i32 s27, s26, 4682")
    e("s_lshr_b32 s27, s27, 16")
    e("s_mul_i32 s28, s27, 14")
    e("s_sub_u32 s28, s26, s28")
    e(f"s_mul_i32 s28, s28, {32 * 896}")
    e("s_lshl_b32 s27, s27, 5")
    e("s_add_u32 s28, s28, s27")
    add64s(30, 10, 28)
    for j in range(8):
        e(f"global_load_ushort v{WO + j}, v{6 + (j >> 2)}, s[30:31] offset:{(j & 3) * 896}")
    e("k1_nowo:")
    e("v_and_b32 v8, 1, v4")
    e("v_lshl_add_u32 v9, v4, 1, v8")
    e("v_xor_b32 v8, 1, v8")
    e("v_lshl_add_u32 v10, v4, 1, v8")
    e("v_mul_u32_u24 v9, 896, v9")
    e("v_mul_u32_u24 v10, 896, v10")
    e("v_lshrrev_b32 v8, 2, v3")
    e("v_mul_u32_u24 v8, 224, v8")
    e("v_and_b32 v11, 3, v3")
    e("v_lshl_add_u32 v8, v11, 3, v8")
    e(f"v_add_u32 v8, {K1_BOFF}, v8")
    e("v_add_u32 v20, v9, v8")
    e("v_add_u32 v21, v10, v8")
    e("v_lshrrev_b32 v8, 1, v3")
    e("v_xor_b32 v8, v8, v4")
    e("v_lshlrev_b32 v11, 7, v3")
    e("s_lshl_b32 s43, s24, 12")
    e("v_add_u32 v11, s43, v11")
    e("v_lshl_add_u32 v22, v8, 4, v11")
    e("v_xor_b32 v23, 64, v22")
    e("v_mov_b32 v9, v20")
    e("v_mov_b32 v10, v21")
    e("v_mov_b32 v12, v22")
    e("v_mov_b32 v13, v23")
    for r in range(56):
        e(f"v_mov_b32 v{ACC + r}, 0")
    e("s_mov_b32 s44, 0")
    e("s_mov_b32 s45, 7")
    e("s_mul_i32 s43, s24, 9216")
    e(f"s_add_u32 s43, s43, {2 * K1_XS}")

    def mainloop(transposed, lab):
        lg = Cnt("lgkmcnt", 15)
        tk = {}

        def rdA(kk, areg):
            for t in range(2):
                e(f"ds_read_b128 {vr(AF + (kk * 2 + t) * 4, 4)}, v{areg} offset:{t * 2048}")
                tk[("A", kk, t)] = lg.issue()

        def rdB(kk, jn, b0, b1):
            off = kk * 7168 + jn * 32
            b = BF + kk * 28 + jn * 4
            e(f"ds_read_b64_tr_b16 {vr(b, 2)}, v{b0} offset:{off}")
            e(f"ds_read_b64_tr_b16 {vr(b + 2, 2)}, v{b1} offset:{off}")
            tk[("B", kk, jn)] = lg.issue(2)

        def half(kk):
            for jn in range(7):
                lg.wait(max(tk[("A", kk, 0)], tk[("A", kk, 1)], tk[("B", kk, jn)]))
                for t in range(2):
                    acc = vr(ACC + (t * 7 + jn) * 4, 4)
                    xf = vr(AF + (kk * 2 + t) * 4, 4)
                    bf = vr(BF + kk * 28 + jn * 4, 4)
                    if transposed:
                        e(f"v_mfma_f32_16x16x32_bf16 {acc}, {bf}, {xf}, {acc}")
                    else:
                        e(f"v_mfma_f32_16x16x32_bf16 {acc}, {xf}, {bf}, {acc}")
                if kk == 0:
                    if jn == 0:
                        rdA(1, 13)
                    rdB(1, jn, 9, 10)
                else:
                    if jn == 0:
                        rdA(0, 12)
                    rdB(0, jn, 9, 10)

        e("s_barrier")
        stamp()
        rdA(0, 12)
        for jn in range(7):
            rdB(0, jn, 9, 10)
        e(f"{lab}:")
        lg.done = lg.n - 16
        half(0)
        e("s_add_u32 s44, s44, 1")
        e("s_cmp_eq_u32 s44, 5")
        e("s_cmov_b32 s44, 0")
        e(f"s_mul_i32 s46, s44, {K1_XS}")
        e(f"s_mul_i32 s47, s44, {K1_BS}")
        e("v_add_u32 v12, s46, v22")
        e("v_add_u32 v13, s46, v23")
        e("v_add_u32 v9, s47, v20")
        e("v_add_u32 v10, s47, v21")
        e("s_barrier")
        half(1)
        e("s_sub_u32 s45, s45, 1")
        e("s_cmp_lg_u32 s45, 0")
        e(f"s_cbranch_scc1 {lab}")
        e("s_waitcnt lgkmcnt(0)")
        e("s_nop 3")

    def out_base(region_sreg):
        e("s_and_b32 s62, s22, 3")
        e("s_lshl_b32 s62, s62, 19")
        e(f"s_add_u32 s{region_sreg}, s{region_sreg}, s62")
        e("s_lshl_b32 s62, s23, 2")
        e("s_add_u32 s62, s62, s24")
        e("s_lshl_b32 s62, s62, 11")
        e(f"s_add_u32 s{region_sreg}, s{region_sreg}, s62")
        add64s(62, 18, region_sreg)
        e("v_lshlrev_b32 v19, 4, v2")

    def out_store(fix):
        for hl in range(4):
            if hl:
                e("v_add_u32 v19, 0x20000, v19")
            for ks in range(2):
                n = hl * 2 + ks
                e(f"s_waitcnt lgkmcnt({7 - n})")
                if fix and ks == 1:
                    e("s_mov_b32 exec_lo, 0")
                    e(f"v_mov_b32 v{RB + n * 4 + 2}, 0")
                    e(f"v_mov_b32 v{RB + n * 4 + 3}, 0")
                    e("s_mov_b32 exec_lo, -1")
                e(f"global_store_dwordx4 v19, {vr(RB + n * 4, 4)}, s[62:63] offset:{ks * 1024}")

    e("s_waitcnt vmcnt(0)")
    for r in range(8):
        e(f"v_lshl_or_b32 v{WJ + r}, v{WJ + 8 + r}, 16, v{WJ + r}")
    e("s_mov_b64 exec, s[64:65]")
    for ee in range(2):
        e(f"global_store_dwordx4 v17, {vr(WJ + 4 * ee, 4)}, s[60:61] offset:{16 * ee}{WTPOL}")
    e("s_mov_b64 exec, -1")
    e("s_cmp_ge_u32 s26, 392")
    e("s_cbranch_scc1 k1_nowo2")
    e("s_lshl_b32 s27, s26, 10")
    e(f"s_add_u32 s27, s27, {WOT}")
    add64s(30, 18, 27)
    e("v_lshlrev_b32 v6, 4, v2")
    for j in range(4):
        e(f"v_lshl_or_b32 v{WO + j}, v{WO + 1 + 2 * j}, 16, v{WO + 2 * j}")
    e(f"global_store_dwordx4 v6, {vr(WO, 4)}, s[30:31]{WTPOL}")
    e("k1_nowo2:")
    e("s_nop 1")
    e("s_cmp_ge_u32 s22, 8")
    e("s_cbranch_scc1 k1_normal")
    sv = _st[0]
    mainloop(True, "k1_loop_t")
    stamp()
    e("s_cmp_ge_u32 s22, 4")
    csel(64, KF, QF)
    e("s_cbranch_scc1 k1_noscale")
    e(f"s_mov_b32 s66, {f32_bits(QSCALE):#x}")
    e(f"s_mov_b32 s67, {f32_bits(QSCALE):#x}")
    for r in range(0, 56, 2):
        e(f"v_pk_mul_f32 {vr(ACC + r, 2)}, {vr(ACC + r, 2)}, s[66:67]")
    e("k1_noscale:")
    e("v_mul_u32_u24 v5, 240, v3")
    e("v_lshl_add_u32 v5, v4, 3, v5")
    e("v_add_u32 v5, s43, v5")
    for jn in range(7):
        for t in range(2):
            a = ACC + (t * 7 + jn) * 4
            e(f"v_cvt_pk_bf16_f32 v{a}, v{a}, v{a + 1}")
            e(f"v_cvt_pk_bf16_f32 v{a + 1}, v{a + 2}, v{a + 3}")
            e(f"ds_write_b64 v5, {vr(a, 2)} offset:{jn * 32 + t * 3840}")
    out_base(64)
    e("v_and_b32 v18, 31, v2")
    e("v_mul_u32_u24 v18, 240, v18")
    e("v_lshrrev_b32 v6, 5, v2")
    e("v_lshl_add_u32 v18, v6, 4, v18")
    e("v_add_u32 v18, s43, v18")
    e("s_waitcnt lgkmcnt(0)")
    stamp()
    for hl in range(4):
        for ks in range(2):
            o8 = 7 * hl + 4 * ks
            e(f"ds_read2_b64 {vr(RB + (hl * 2 + ks) * 4, 4)}, v18 offset0:{o8} offset1:{o8 + 1}")
    out_store(True)
    stamp()
    if INSTR: e("s_waitcnt vmcnt(0)")
    stamp()
    stamp_flush(69)
    prof_end(0)
    e("s_endpgm")
    _st[0] = sv
    e("k1_normal:")
    mainloop(False, "k1_loop_n")
    e("s_cmp_ge_u32 s22, 12")
    e("s_cbranch_scc1 k1_f")
    e(f"s_mov_b32 s64, {VF}")
    e("v_mul_u32_u24 v5, 80, v3")
    e("v_lshl_add_u32 v5, v4, 3, v5")
    e("v_add_u32 v5, s43, v5")
    for jn in range(7):
        for t in range(2):
            a = ACC + (t * 7 + jn) * 4
            e(f"v_cvt_pk_bf16_f32 v{a}, v{a}, v{a + 1}")
            e(f"v_cvt_pk_bf16_f32 v{a + 1}, v{a + 2}, v{a + 3}")
            e(f"ds_write_b64 v5, {vr(a, 2)} offset:{jn * 1280 + t * 32}")
    out_base(64)
    e("v_and_b32 v18, 31, v2")
    e("v_mul_u32_u24 v18, 80, v18")
    e("v_lshrrev_b32 v6, 5, v2")
    e("v_lshl_add_u32 v18, v6, 4, v18")
    e("v_add_u32 v18, s43, v18")
    for r in range(32):
        e(f"v_mov_b32 v{RB + r}, 0x3f803f80")
    e("s_waitcnt lgkmcnt(0)")
    e("s_mov_b32 exec_lo, 0x0fffffff")
    e("s_mov_b32 exec_hi, 0x0fffffff")
    for hl in range(4):
        for ks in range(2):
            e(f"ds_read_b128 {vr(RB + (hl * 2 + ks) * 4, 4)}, v18 offset:{hl * 28 * 80 + ks * 32}")
    e("s_mov_b64 exec, -1")
    out_store(False)
    prof_end(0)
    e("s_endpgm")
    e("k1_f:")
    e("v_lshlrev_b32 v5, 6, v3")
    e("v_lshl_add_u32 v5, v4, 3, v5")
    e("v_add_u32 v5, s43, v5")
    for jn in range(7):
        for t in range(2):
            a = ACC + (t * 7 + jn) * 4
            e(f"v_cvt_pk_bf16_f32 v{a}, v{a}, v{a + 1}")
            e(f"v_cvt_pk_bf16_f32 v{a + 1}, v{a + 2}, v{a + 3}")
            e(f"ds_write_b64 v5, {vr(a, 2)} offset:{jn * 1024 + t * 32}")
    e("s_sub_u32 s64, s22, 12")
    e(f"s_mul_i32 s64, s64, {112 * 4096}")
    e(f"s_add_u32 s64, s64, {YT}")
    e("s_lshl_b32 s62, s23, 8")
    e("s_add_u32 s64, s64, s62")
    e("s_lshl_b32 s62, s24, 6")
    e("s_add_u32 s64, s64, s62")
    add64s(62, 18, 64)
    e("v_lshlrev_b32 v18, 4, v2")
    e("v_add_u32 v18, s43, v18")
    e("v_lshrrev_b32 v19, 2, v2")
    e("v_lshlrev_b32 v19, 12, v19")
    e("v_and_b32 v6, 3, v2")
    e("v_lshl_add_u32 v19, v6, 4, v19")
    e("s_waitcnt lgkmcnt(0)")
    for n in range(7):
        e(f"ds_read_b128 {vr(RB + n * 4, 4)}, v18 offset:{n * 1024}")
    for n in range(7):
        if n:
            e("v_add_u32 v19, 0x10000, v19")
        e(f"s_waitcnt lgkmcnt({6 - n})")
        e(f"global_store_dwordx4 v19, {vr(RB + n * 4, 4)}, s[62:63]")
    prof_end(0)
    e("k1_end:")
    e("s_endpgm")
    e("k1_code_end:")
    return descriptor(name, 168)


def tables():
    T = []
    T.append('.section .rodata,"a"')
    for i in range(448):
        T.append(f".set TC_{i}, {bf16_bits(math.cos(2 * math.pi * i / 448)):#x}")
    sc = 2.0 / (2048 * 448)
    for i in range(448):
        T.append(f".set TG_{i}, {bf16_bits(sc * math.cos(2 * math.pi * i / 448)):#x}")
    T.append(""".altmacro
.macro emitc a
 .short TC_\\a
.endm
.macro emitg a
 .short TG_\\a
.endm
.macro emitgh a
 .short TG_\\a - 0x80
.endm
.p2align 8
tab_F:
.set dd, 0
.rept 448
 .set aa, 0
 .rept 225
  emitc %aa
  .set aa, (aa + dd) % 448
 .endr
 .set aa, (dd + 112) % 448
 .rept 223
  emitc %aa
  .set aa, (aa + dd) % 448
 .endr
 .set dd, dd+1
.endr
.p2align 8
tab_G:
.set ct, 0
.rept 28
 .set ks, 0
 .rept 14
  .set ln, 0
  .rept 64
   .set dc, 16*ct + (ln & 15)
   .set cc, 32*ks + 8*(ln >> 4)
   .rept 8
    .if cc == 0
     emitgh 0
    .elseif cc == 224
     emitgh %((224*dc) % 448)
    .elseif cc < 224
     emitg %((cc*dc) % 448)
    .else
     emitg %(((cc-224)*dc + 112) % 448)
    .endif
    .set cc, cc+1
   .endr
   .set ln, ln+1
  .endr
  .set ks, ks+1
 .endr
 .set ct, ct+1
.endr
.noaltmacro""")
    def emit_u16(vals):
        for i in range(0, len(vals), 16):
            w = [vals[j] | (vals[j + 1] << 16) for j in range(i, min(i + 16, len(vals)), 2)]
            T.append(".long " + ",".join(f"{x:#x}" for x in w))

    def emit_u32(vals):
        for i in range(0, len(vals), 8):
            T.append(".long " + ",".join(f"{x:#x}" for x in vals[i:i + 8]))

    T.append(".p2align 8\ntab_B64:")
    v = []
    for wv in range(4):
        for ty in range(3):
            for ks in range(2):
                for l in range(64):
                    n = 16 * wv + (l & 15)
                    for j in range(8):
                        k = 32 * ks + 8 * (l >> 4) + j
                        ang = 2 * math.pi * ((n * k) % 64) / 64
                        val = math.cos(ang) if ty == 0 else (math.sin(ang) if ty == 1 else -math.sin(ang))
                        if abs(val) < 1e-9: val = 0.0
                        v.append(bf16_bits(val))
    emit_u16(v)
    T.append(".p2align 8\ntab_A32:")
    v = []
    for ty in range(2):
        for mt in range(2):
            for l in range(64):
                m = 16 * mt + (l & 15)
                g = l >> 4
                for j in range(8):
                    n2 = 4 * g + j if j < 4 else 16 + 4 * g + j - 4
                    ang = 2 * math.pi * ((m * n2) % 32) / 32
                    val = math.cos(ang) if ty == 0 else math.sin(ang)
                    if abs(val) < 1e-9: val = 0.0
                    v.append(bf16_bits(val))
    emit_u16(v)
    T.append(".p2align 8\ntab_TW:")
    v = []
    for wv in range(4):
        for mt in range(2):
            for cs in range(2):
                for l in range(64):
                    f1 = 16 * wv + (l & 15)
                    g = l >> 4
                    for r in range(4):
                        n2 = 16 * mt + 4 * g + r
                        ang = 2 * math.pi * ((n2 * f1) % 2048) / 2048
                        v.append(f32_bits(math.cos(ang) if cs == 0 else math.sin(ang)))
    emit_u32(v)
    T.append("tab_end:")
    return "\n".join(T)


def main():
    which = sys.argv[1] if len(sys.argv) > 1 else "123"
    launches = []
    descs = []
    if "1" in which:
        launches.append(f"; @launch kernel=k1_kernel grid=(256,1,1) block=({256 + 64 * NP},1,1) lds=153600")
    if "2" in which:
        launches.append("; @launch kernel=k2_kernel grid=(256,1,1) block=(512,1,1) lds=57600")
    if "3" in which:
        launches.append("; @launch kernel=k3_kernel grid=(224,1,1) block=(1024,1,1) lds=131072")
    print("\n".join(launches))
    print('.amdgcn_target "amdgcn-amd-amdhsa--gfx950"\n.text')
    if "1" in which:
        descs.append(k1())
    if "2" in which:
        from gen_k2 import k2
        descs.append(k2())
    if "3" in which:
        from gen_k3 import k3
        descs.append(k3())
    print("\n".join(L))
    print(tables())
    print("\n".join(descs))


if __name__ == "__main__":
    import gen
    gen.main()
```
